```python
import torch

def _softmax(x, axis=-1):
    return torch.softmax(x, dim=axis)
def _gelu(x):
    return torch.nn.functional.gelu(x, approximate="tanh")
def _silu(x):
    return torch.nn.functional.silu(x)
def _sigmoid(x):
    return torch.sigmoid(x)
def _layernorm(x, axis=-1, eps=1e-5):
    m = x.mean(dim=axis, keepdim=True)
    v = x.var(dim=axis, keepdim=True, unbiased=False)
    return (x - m) / torch.sqrt(v + eps)
def _scatter_add(tgt, idx, src, axis=0):
    return tgt.clone().index_add_(axis, idx, src)
def _segment_sum(src, seg, n):
    out = torch.zeros((n,) + src.shape[1:], dtype=src.dtype)
    return out.index_add_(0, seg, src)
def _pad(x, pw):
    flat = tuple(v for pair in reversed(pw) for v in pair)
    return torch.nn.functional.pad(x, flat)

kernel_name = 'gated_mix__mha_block__moe_arch_mod__prompt'

def setup_inputs():

    _w = (lambda a: (lambda t: t.to(torch.bfloat16) if t.is_floating_point() else t)(torch.as_tensor(a)))
    def _A_setup():
        B, S, D, H = 1, 2048, 512, 32
        return {
            "x": _w((lambda *s: torch.randn(*s, dtype=torch.bfloat16) * 0.05)(B, S, D)),
            "wqkv": _w((lambda *s: torch.randn(*s, dtype=torch.bfloat16) * 0.8)(D, 3 * D)),
            "wo": _w((lambda *s: torch.randn(*s, dtype=torch.bfloat16) * 0.1)(D, D)),
        }
    _A_in = _A_setup()

    def _B_setup():
        B, S, D, F, C = 1, 2048, 512, 1792, 1
        return {
            "x": _w((lambda *s: torch.randn(*s, dtype=torch.bfloat16) * 0.05)(B, S, D)),
            "w_r": _w((lambda *s: torch.randn(*s, dtype=torch.bfloat16) * 1.6)(D)),
            "w_gate": _w((lambda *s: torch.randn(*s, dtype=torch.bfloat16) * 0.2)(D, F)),
            "w_up": _w((lambda *s: torch.randn(*s, dtype=torch.bfloat16) * 0.2)(D, F)),
            "w_down": _w((lambda *s: torch.randn(*s, dtype=torch.bfloat16) * 0.2)(F, D)),
        }
    _B_in = _B_setup()

    return {
        "A_x": _A_in["x"],
        "A_wqkv": _A_in["wqkv"],
        "A_wo": _A_in["wo"],
        "B_x": _B_in["x"],
        "B_w_r": _B_in["w_r"],
        "B_w_gate": _B_in["w_gate"],
        "B_w_up": _B_in["w_up"],
        "B_w_down": _B_in["w_down"],
        "gate_w": _w((lambda *s: torch.randn(*s, dtype=torch.bfloat16) * 0.05)(512) * 16.0),
    }

def reference(A_x, A_wqkv, A_wo, B_x, B_w_r, B_w_gate, B_w_up, B_w_down, gate_w):
    def _A_ref(x, wqkv, wo):
        B, S, D = x.shape
        H = 32
        Dh = D // H
        qkv = (lambda x, *d: x.permute(*d))((x @ wqkv).reshape(B, S, 3, H, Dh), 2, 0, 3, 1, 4)
        q, k, v = qkv[0], qkv[1], qkv[2]
        scores = torch.einsum("bhqd,bhkd->bhqk", q, k) * (Dh ** -0.5)
        p = _softmax(scores, axis=-1)
        o = torch.einsum("bhqk,bhkd->bhqd", p, v)
        return (lambda x, *d: x.permute(*d))(o, 0, 2, 1, 3).reshape(B, S, D) @ wo

    def _B_ref(x, w_r, w_gate, w_up, w_down):
        B, S, D = x.shape
        C = 1
        r = x @ w_r
        idx = torch.argsort(-r, axis=-1)[:, :C]
        idx_e = (lambda x, n, axis: torch.repeat_interleave(x, n, dim=axis))(idx.reshape(B, C, 1), D, axis=2)
        x_sel = (lambda x, i, axis: torch.take_along_dim(x, i, dim=axis))(x, idx_e, axis=1)
        g = _silu(x_sel @ w_gate)
        u = x_sel @ w_up
        y = (g * u) @ w_down
        r_sel = _sigmoid((lambda x, i, axis: torch.take_along_dim(x, i, dim=axis))(r, idx, axis=1))
        y = y * r_sel.reshape(B, C, 1)
        b_off = (torch.arange(B) * S).reshape(B, 1)
        flat_idx = (idx + b_off).reshape(B * C)
        zero = (x * 0.0).reshape(B * S, D)
        upd = _scatter_add(zero, flat_idx, y.reshape(B * C, D), axis=0)
        return x + upd.reshape(B, S, D)

    x = A_x
    g = _sigmoid((x * gate_w).sum(-1, keepdims=True))
    a = _A_ref(x, A_wqkv, A_wo)
    b = _B_ref(x, B_w_r, B_w_gate, B_w_up, B_w_down)
    return g * a + (1 - g) * b
```

```python
import math, struct, sys

NAME = "gated_mix__mha_block__moe_arch_mod__prompt"

WS_QF = 0x000000
WS_KV = 0x200000
WS_OF = 0x600000
WS_G  = 0x800000
WS_RK = 0x802000
WS_Y  = 0x803000
WS_SIZE = 0x10000000

def f32bits(x): return struct.unpack("<I", struct.pack("<f", x))[0]
LOG2E = 1.4426950408889634
QSCALE = 0.25 * LOG2E

class Asm:
    def __init__(self): self.l = []
    def __call__(self, s):
        for line in s.strip("\n").split("\n"):
            line = line.strip()
            if not line: continue
            if line.endswith(":") : self.l.append(line)
            else: self.l.append("    " + line)
    def text(self): return "\n".join(self.l) + "\n"

def vr(a, n): return f"v[{a}:{a+n-1}]"
def sr(a, n): return f"s[{a}:{a+n-1}]"

def srd(a, d, lo, nbytes):
    a(f"""s_mov_b32 s{d}, s{lo}
s_mov_b32 s{d+1}, s{lo+1}
s_mov_b32 s{d+2}, {nbytes:#x}
s_mov_b32 s{d+3}, 0x00020000""")

def kd(name, vgpr, sgpr):
    acc = (vgpr + 3)//4*4
    return f""".section .rodata,"a"
.p2align 6
.amdhsa_kernel {name}
  .amdhsa_next_free_vgpr {vgpr}
  .amdhsa_next_free_sgpr {sgpr}
  .amdhsa_accum_offset {acc}
  .amdhsa_group_segment_fixed_size 0
  .amdhsa_kernarg_size 96
  .amdhsa_user_sgpr_count 2
  .amdhsa_user_sgpr_kernarg_segment_ptr 1
  .amdhsa_system_sgpr_workgroup_id_x 1
.end_amdhsa_kernel
.text
"""

def header(a, name):
    a.l.append(f".globl {name}\n.p2align 8\n.type {name},@function\n{name}:")

def umax_reduce64(a, v, t):
    a(f"""s_nop 1
v_max_u32_dpp v{v}, v{v}, v{v} quad_perm:[1,0,3,2] row_mask:0xf bank_mask:0xf
s_nop 1
v_max_u32_dpp v{v}, v{v}, v{v} quad_perm:[2,3,0,1] row_mask:0xf bank_mask:0xf
s_nop 1
v_max_u32_dpp v{v}, v{v}, v{v} row_half_mirror row_mask:0xf bank_mask:0xf
s_nop 1
v_max_u32_dpp v{v}, v{v}, v{v} row_mirror row_mask:0xf bank_mask:0xf
v_mov_b32 v{t}, v{v}
s_nop 1
v_permlane16_swap_b32 v{t}, v{v}
s_nop 1
v_max_u32 v{v}, v{v}, v{t}
v_mov_b32 v{t}, v{v}
s_nop 1
v_permlane32_swap_b32 v{t}, v{v}
s_nop 1
v_max_u32 v{v}, v{v}, v{t}""")

def gen_k1(a):
    name = "k1_qkv_kernel"
    header(a, name)
    a("""
s_cmp_ge_u32 s2, 256
s_cbranch_scc1 K1_END
s_load_dwordx4 s[4:7], s[0:1], 0
s_load_dwordx2 s[8:9], s[0:1], 32
s_load_dwordx2 s[10:11], s[0:1], 64
s_load_dwordx2 s[12:13], s[0:1], 88
v_lshrrev_b32 v1, 6, v0
v_and_b32 v2, 63, v0
s_and_b32 s21, s2, 7
v_readfirstlane_b32 s20, v1
s_lshr_b32 s22, s2, 3
s_lshr_b32 s23, s21, 1
s_lshl_b32 s23, s23, 3
s_lshr_b32 s24, s22, 2
s_add_u32 s23, s23, s24
s_and_b32 s25, s22, 3
s_and_b32 s26, s21, 1
s_lshl_b32 s26, s26, 2
s_add_u32 s26, s26, s25
s_lshl_b32 s25, s25, 1
s_add_u32 s27, s24, s25
s_and_b32 s27, s27, 7
s_cmp_lt_u32 s20, 4
s_cbranch_scc1 K1_COMPUTE
""")
    a("""
s_sub_u32 s20, s20, 4
s_cmp_eq_u32 s20, 0
s_movk_i32 s30, 3072
s_cmovk_i32 s30, 1024
s_cselect_b32 s31, 3, 0
s_cselect_b32 s32, 0, 4
s_cselect_b32 s33, 64, 0
s_mov_b32 s34, 0x30000
s_cmovk_i32 s34, 128
s_mov_b32 s18, 0x180000
s_cmov_b32 s18, 0x200000
s_lshl_b32 s35, s23, 16
s_sub_u32 s36, s20, 1
s_lshl_b32 s36, s36, 10
s_lshl_b32 s37, s26, 7
s_add_u32 s36, s36, s37
s_cmp_eq_u32 s20, 0
s_cselect_b32 s35, s35, s36
s_mov_b32 s19, 0x00020000
v_lshrrev_b32 v3, 3, v2
v_and_b32 v4, 7, v2
v_lshrrev_b32 v5, 1, v3
v_and_b32 v5, s31, v5
v_lshlrev_b32 v6, 1, v3
v_and_b32 v6, s32, v6
v_xor_b32 v4, v4, v5
v_xor_b32 v4, v4, v6
v_lshlrev_b32 v4, 4, v4
v_mul_lo_u32 v3, v3, s30
v_add3_u32 v8, v3, v4, s35
v_xor_b32 v9, s33, v8
s_lshl_b32 s38, s30, 3
s_sub_u32 s38, s38, 1024
s_lshl_b32 s39, s20, 13
s_mov_b32 s40, 0
s_waitcnt lgkmcnt(0)
s_cmp_eq_u32 s20, 0
s_cselect_b32 s16, s4, s6
s_cselect_b32 s17, s5, s7
K1_LD_LOOP:
s_cmp_lt_u32 s40, 4
s_cbranch_scc1 K1_LD_ISSUE
s_cmp_eq_u32 s40, 4
s_cbranch_scc0 K1_LD_W16
s_waitcnt vmcnt(24)
s_barrier
K1_LD_W16:
s_waitcnt vmcnt(16)
s_barrier
K1_LD_ISSUE:
s_add_u32 s41, s40, s27
s_and_b32 s41, s41, 7
s_mul_i32 s41, s41, s34
s_and_b32 s42, s40, 3
s_lshl_b32 s42, s42, 15
s_add_u32 m0, s42, s39
""")
    for i in range(8):
        if i == 4:
            a("s_add_u32 m0, m0, 4096\ns_add_u32 s41, s41, 4096")
        elif i == 0:
            a("s_nop 0")
        a(f"buffer_load_dwordx4 v{8+(i&1)}, s[16:19], s41 offen offset:{(i%4)*1024} lds")
        if i != 7: a("s_add_u32 s41, s41, s38")
    a("""
s_add_u32 s40, s40, 1
s_cmp_lt_u32 s40, 8
s_cbranch_scc1 K1_LD_LOOP
s_waitcnt vmcnt(16)
s_barrier
s_waitcnt vmcnt(8)
s_barrier
s_waitcnt vmcnt(0)
s_barrier
s_endpgm
""")
    a("""
K1_COMPUTE:
s_and_b32 s28, s20, 1
s_lshr_b32 s29, s20, 1
v_lshrrev_b32 v3, 5, v2
v_and_b32 v4, 31, v2
v_lshrrev_b32 v5, 1, v4
v_and_b32 v5, 7, v5
v_xor_b32 v5, v5, v3
v_lshlrev_b32 v5, 4, v5
s_lshl_b32 s30, s28, 12
v_lshl_add_u32 v5, v4, 7, v5
v_add_u32 v10, s30, v5
v_xor_b32 v11, 32, v10
v_xor_b32 v12, 64, v10
v_xor_b32 v13, 0x60, v10
v_bfe_u32 v5, v2, 2, 2
v_lshl_add_u32 v6, v3, 3, v5
v_lshlrev_b32 v6, 7, v6
v_lshrrev_b32 v5, 1, v5
v_xor_b32 v5, s29, v5
v_lshl_add_u32 v6, v5, 6, v6
v_bfe_u32 v5, v2, 4, 1
v_lshl_add_u32 v6, v5, 5, v6
v_and_b32 v5, 3, v2
v_lshl_add_u32 v6, v5, 3, v6
v_add_u32 v14, 0x2000, v6
v_and_b32 v5, 1, v2
v_lshlrev_b32 v5, 10, v5
v_lshl_add_u32 v5, v3, 4, v5
v_add_u32 v15, 0x20000, v5
v_lshlrev_b32 v7, 4, v2
s_waitcnt lgkmcnt(0)
s_cmp_eq_u32 s28, 0
s_cselect_b32 s16, s8, s10
s_cselect_b32 s17, s9, s11
s_mov_b32 s18, 1024
s_mov_b32 s19, 0x00020000
s_lshl_b32 s31, s28, 10
s_add_u32 m0, s31, 0x20000
""")
    srd(a, 44, 12, WS_SIZE)
    a("buffer_load_dwordx4 v7, s[16:19], 0 offen lds")
    for i in range(32):
        a(f"v_mov_b64 {vr(64+2*i,2)}, 0")
    a(f"""
s_cmp_lg_u32 s2, 0
s_cbranch_scc1 K1_NOZ
s_cmp_gt_u32 s20, 1
s_cbranch_scc1 K1_NOZ
s_add_u32 s31, s31, {WS_Y:#x}
buffer_store_dwordx4 v[64:67], v7, s[44:47], s31 offen
K1_NOZ:
s_mov_b32 s40, 0
s_waitcnt vmcnt(0)
K1_LOOP:
s_and_b32 s42, s40, 3
s_lshl_b32 s42, s42, 15
s_add_u32 s41, s40, s27
s_and_b32 s41, s41, 7
s_lshl_b32 s41, s41, 7
v_add_u32 v16, s42, v10
v_add_u32 v17, s42, v11
v_add_u32 v18, s42, v12
v_add_u32 v19, s42, v13
v_add_u32 v20, s42, v14
v_add_u32 v21, s41, v15
s_barrier
""")
    def reads(s):
        b = 128 + 20*s
        a(f"ds_read_b128 {vr(b,4)}, v{16+s}")
        for sec in range(3):
            for jj in range(2):
                a(f"ds_read_b64_tr_b16 {vr(b+8+4*sec+2*jj,2)}, v20 offset:{sec*8192+s*2048+jj*512}")
        a(f"ds_read_b128 {vr(b+4,4)}, v21 offset:{s*32}")
    def mfmas(s):
        b = 128 + 20*s
        X = vr(b,4); RG = vr(b+4,4); WQ = vr(b+8,4); WK = vr(b+12,4); WV = vr(b+16,4)
        a(f"v_mfma_f32_32x32x16_bf16 v[64:79], {WQ}, {X}, v[64:79]")
        a(f"v_mfma_f32_32x32x16_bf16 v[80:95], {WK}, {X}, v[80:95]")
        a(f"v_mfma_f32_32x32x16_bf16 v[96:111], {X}, {WV}, v[96:111]")
        a(f"v_mfma_f32_32x32x16_bf16 v[112:127], {RG}, {X}, v[112:127]")
    reads(0); reads(1)
    a("s_waitcnt lgkmcnt(8)"); mfmas(0); reads(2)
    a("s_waitcnt lgkmcnt(8)"); mfmas(1); reads(3)
    a("s_waitcnt lgkmcnt(8)"); mfmas(2)
    a("s_waitcnt lgkmcnt(0)"); mfmas(3)
    a("""
s_add_u32 s40, s40, 1
s_cmp_lt_u32 s40, 8
s_cbranch_scc1 K1_LOOP
""")
    a(f"""
s_lshl_b32 s30, s23, 1
s_add_u32 s30, s30, s28
s_lshl_b32 s31, s26, 2
s_lshl_b32 s32, s29, 1
s_add_u32 s31, s31, s32
s_lshl_b32 s33, s30, 10
s_lshl_b32 s34, s31, 16
s_add_u32 s34, s34, s33
s_add_u32 s35, s34, 0x10000
s_lshl_b32 s36, s31, 17
s_add_u32 s36, s36, s33
s_add_u32 s36, s36, {WS_KV:#x}
s_add_u32 s37, s36, 0x20000
s_add_u32 s38, s36, 0x10000
s_mov_b32 s48, {f32bits(QSCALE):#x}
s_mov_b32 s49, {f32bits(QSCALE):#x}
v_and_b32 v5, 0x13, v2
v_and_b32 v6, 4, v2
v_lshl_or_b32 v5, v6, 1, v5
v_and_b32 v6, 8, v2
v_lshrrev_b32 v6, 1, v6
v_or_b32 v5, v5, v6
v_lshlrev_b32 v5, 4, v5
v_lshl_add_u32 v22, v3, 9, v5
v_and_b32 v5, 15, v2
v_lshlrev_b32 v5, 4, v5
v_lshl_add_u32 v5, v3, 8, v5
v_bfe_u32 v6, v2, 4, 1
v_lshl_add_u32 v23, v6, 17, v5
""")
    for i in range(8):
        a(f"v_pk_mul_f32 {vr(64+2*i,2)}, {vr(64+2*i,2)}, s[48:49]")
    for i in range(8):
        a(f"v_cvt_pk_bf16_f32 v{128+i}, v{64+2*i}, v{65+2*i}")
    a(f"buffer_store_dwordx4 v[128:131], v7, s[44:47], s34 offen")
    a(f"buffer_store_dwordx4 v[132:135], v7, s[44:47], s35 offen")
    for i in range(8):
        a(f"v_cvt_pk_bf16_f32 v{136+i}, v{80+2*i}, v{81+2*i}")
    a(f"buffer_store_dwordx4 v[136:139], v22, s[44:47], s36 offen")
    a(f"buffer_store_dwordx4 v[140:143], v22, s[44:47], s37 offen")
    for i in range(8):
        a(f"v_cvt_pk_bf16_f32 v{144+i}, v{96+2*i}, v{97+2*i}")
    a(f"buffer_store_dwordx4 v[144:147], v23, s[44:47], s38 offen")
    a(f"buffer_store_dwordx4 v[148:151], v23, s[44:47], s38 offen offset:512")
    a(f"""
s_or_b32 s39, s26, s29
s_cmp_lg_u32 s39, 0
s_cbranch_scc1 K1_END
v_cvt_pk_bf16_f32 v24, v112, v113
v_and_b32 v25, 0xffff0000, v24
v_mul_f32 v25, {f32bits(-LOG2E):#x}, v25
v_exp_f32 v25, v25
v_lshlrev_b32 v26, 16, v24
v_ashrrev_i32 v27, 31, v26
v_add_f32 v25, 1.0, v25
v_rcp_f32 v25, v25
v_or_b32 v27, 0x80000000, v27
v_xor_b32 v26, v26, v27
v_and_b32 v26, 0xffff0000, v26
s_lshl_b32 s33, s30, 5
v_add_u32 v28, s33, v4
v_sub_u32 v27, 0x7ff, v28
v_or_b32 v26, v26, v27
v_cvt_pk_bf16_f32 v25, v25, v25
v_lshlrev_b32 v28, 2, v28
v_and_b32 v25, 0xffff0000, v25
s_mov_b32 s33, {WS_G:#x}
buffer_store_dword v25, v28, s[44:47], s33 offen
""")
    umax_reduce64(a, 26, 27)
    a(f"""
s_lshl_b32 s33, s30, 2
s_add_u32 s33, s33, {WS_RK:#x}
v_mov_b32 v28, 0
buffer_store_dword v26, v28, s[44:47], s33 offen
K1_END:
s_endpgm
""")
    return name, 208, 56, (256, 512, 132*1024)

LDS_V = 0x10000
LDS_ONES = 0x20000
LDS_FFN = 0x21800
def gen_k2(a):
    name = "k2_attn_kernel"
    header(a, name)
    SA, SB, O, MN = 16, 32, 48, 64
    KF, VLO, VHI = 80, 84, 88
    WG, WU, WD = 92, 96, 100
    T = 104
    a(f"""
s_cmp_ge_u32 s2, 256
s_cbranch_scc1 K2_END
s_load_dwordx2 s[12:13], s[0:1], 88
s_load_dwordx2 s[4:5], s[0:1], 0
s_load_dwordx4 s[8:11], s[0:1], 40
s_load_dwordx2 s[6:7], s[0:1], 56
v_lshrrev_b32 v1, 6, v0
v_and_b32 v2, 63, v0
s_and_b32 s21, s2, 7
v_readfirstlane_b32 s20, v1
s_lshr_b32 s22, s2, 3
s_and_b32 s23, s22, 3
s_lshl_b32 s24, s21, 2
s_add_u32 s23, s23, s24
s_lshr_b32 s24, s22, 2
v_lshlrev_b32 v3, 4, v2
s_lshl_b32 s25, s24, 3
s_add_u32 s25, s25, s20
s_lshl_b32 s26, s23, 16
s_lshl_b32 s27, s25, 10
s_add_u32 s26, s26, s27
s_lshl_b32 s27, s23, 17
s_add_u32 s27, s27, {WS_KV:#x}
s_lshr_b32 s28, s20, 2
s_lshl_b32 s28, s28, 16
s_and_b32 s29, s20, 3
s_lshl_b32 s29, s29, 10
s_add_u32 s28, s28, s29
s_add_u32 s27, s27, s28
s_lshl_b32 s29, s24, 13
s_mov_b32 m0, s28
v_lshlrev_b32 v9, 2, v2
s_waitcnt lgkmcnt(0)
""")
    srd(a, 44, 12, WS_SIZE)
    a(f"""
buffer_load_dwordx4 v[4:7], v3, s[44:47], s26 offen
s_mov_b32 s30, {WS_RK:#x}
buffer_load_dword v{T+15}, v9, s[44:47], s30 offen
s_mov_b32 s31, 0
K2_DMA:
s_add_u32 s30, s27, s29
s_add_u32 s29, s29, 4096
s_and_b32 s29, s29, 0xffff
buffer_load_dwordx4 v3, s[44:47], s30 offen lds
s_add_u32 m0, m0, 4096
s_add_u32 s31, s31, 1
s_cmp_lt_u32 s31, 16
s_cbranch_scc1 K2_DMA
""")
    a(f"""
s_min_u32 s32, s22, 27
s_mul_i32 s33, s21, 28
s_add_u32 s32, s32, s33
s_lshl_b32 s33, s32, 4
s_lshl_b32 s34, s32, 13
s_lshl_b32 s35, s20, 7
s_add_u32 s34, s34, s35
v_mul_u32_u24 v10, 3584, v0
v_lshrrev_b32 v11, 3, v2
v_lshlrev_b32 v11, 10, v11
v_and_b32 v12, 7, v2
v_lshl_add_u32 v11, v12, 4, v11
""")
    srd(a, 48, 8, 512*1792*2)
    srd(a, 52, 10, 512*1792*2)
    srd(a, 56, 6, 512*1792*2)
    srd(a, 60, 4, 2048*512*2)
    a(f"""
buffer_load_dwordx4 {vr(WG,4)}, v10, s[48:51], s33 offen
buffer_load_dwordx4 {vr(WU,4)}, v10, s[52:55], s33 offen
buffer_load_dwordx4 {vr(WD,4)}, v11, s[56:59], s34 offen
v_mov_b32 v8, 0xdddddddd
v_mov_b32 v{T}, 0x3f803f80
v_mov_b32 v{T+1}, 0x3f803f80
v_mov_b32 v{T+2}, 0x3f803f80
v_mov_b32 v{T+3}, 0x3f803f80
v_lshlrev_b32 v12, 4, v0
v_add_u32 v12, {LDS_ONES:#x}, v12
v_cmp_gt_u32 vcc, 384, v0
s_and_saveexec_b64 s[36:37], vcc
ds_write_b128 v12, {vr(T,4)}
s_mov_b64 exec, s[36:37]
v_lshrrev_b32 v13, 5, v2
v_and_b32 v14, 15, v2
v_lshlrev_b32 v14, 4, v14
v_lshl_add_u32 v14, v13, 8, v14
v_and_b32 v13, 16, v2
v_cmp_eq_u32 vcc, 0, v13
v_mov_b32 v15, {LDS_ONES:#x}
v_mov_b32 v13, {LDS_V:#x}
v_cndmask_b32 v13, v15, v13, vcc
v_add_u32 v{T+12}, v13, v14
v_mov_b32 v13, 4096
v_cndmask_b32 v15, 0, v13, vcc
s_mov_b32 s40, 0
s_mov_b32 s41, 1
s_mov_b32 s42, 0
s_waitcnt vmcnt(17) lgkmcnt(0)
s_barrier
ds_read_b128 {vr(KF,4)}, v3
s_waitcnt lgkmcnt(0)
v_mfma_f32_32x32x16_bf16 {vr(SA,16)}, {vr(KF,4)}, v[4:7], 0
s_nop 15
""")
    a(f"v_max3_f32 v{T}, v{SA}, v{SA+1}, v{SA+2}")
    for i in range(6):
        a(f"v_max3_f32 v{T}, v{T}, v{SA+3+2*i}, v{SA+4+2*i}")
    a(f"""v_max_f32 v{T}, v{T}, v{SA+15}
K2_SETMAX:
v_mov_b32 v{T+1}, v{T}
s_nop 1
v_permlane32_swap_b32 v{T+1}, v{T}
s_nop 1
v_max_f32 v{T}, v{T}, v{T+1}
v_mul_f32 v{MN}, -1.0, v{T}
v_mul_f32 v{MN+1}, -1.0, v{T}
v_mov_b32 v13, v3
v_mov_b32 v14, v{T+12}
""")
    for i in range(1, 8):
        a(f"v_mov_b64 {vr(MN+2*i,2)}, {vr(MN,2)}")
    a(f"ds_read_b128 {vr(VLO,4)}, v14")
    for i in range(8):
        a(f"v_mov_b64 {vr(O+2*i,2)}, 0")
    a(f"v_mfma_f32_32x32x16_bf16 {vr(SA,16)}, {vr(KF,4)}, v[4:7], {vr(MN,16)}")
    a(f"ds_read_b128 {vr(KF,4)}, v13 offset:1024")
    for i in range(4):
        a(f"v_mov_b64 {vr(SB+8+2*i,2)}, 0")
    for i in range(2):
        a(f"v_mov_b64 {vr(VHI+2*i,2)}, 0")
    a("s_nop 7\ns_waitcnt lgkmcnt(0)")
    a("K2_LOOP:")
    for u in range(4):
        cur = SA if u % 2 == 0 else SB
        nxt = SB if u % 2 == 0 else SA
        e = lambda i: a(f"v_exp_f32 v{cur+i}, v{cur+i}")
        e(0); e(1)
        a("s_waitcnt lgkmcnt(1)")
        a(f"v_smfmac_f32_32x32x32_bf16 {vr(O,16)}, {vr(VHI,4)}, {vr(nxt+8,8)}, v8")
        a(f"v_mfma_f32_32x32x16_bf16 {vr(nxt,16)}, {vr(KF,4)}, v[4:7], {vr(MN,16)}")
        a(f"ds_read_b128 {vr(KF,4)}, v13 offset:{(u+2)*1024}")
        a(f"ds_read_b128 {vr(VHI,4)}, v14 offset:{u*1024+512}")
        for i in range(2, 10): e(i)
        a("s_waitcnt lgkmcnt(2)")
        a(f"v_smfmac_f32_32x32x32_bf16 {vr(O,16)}, {vr(VLO,4)}, {vr(cur,8)}, v8")
        a(f"ds_read_b128 {vr(VLO,4)}, v14 offset:{(u+1)*1024}")
        if u == 3:
            a("v_add_u32 v13, 4096, v13\nv_add_u32 v14, v15, v14\ns_add_u32 s40, s40, 1\ns_cmp_lg_u32 s40, s41")
        for i in range(10, 16): e(i)
    a(f"""
s_cbranch_scc1 K2_LOOP
s_cmp_eq_u32 s40, 16
s_cbranch_scc1 K2_FIN
s_cmp_eq_u32 s40, 1
s_cbranch_scc0 K2_STAGEC
s_waitcnt vmcnt(14)
s_barrier
""")
    umax_reduce64(a, T+15, T+14)
    a(f"""
s_nop 0
v_readfirstlane_b32 s43, v{T+15}
v_lshlrev_b32 v{T+14}, 1, v0
s_mov_b32 s41, 4
s_and_b32 s43, s43, 0x7ff
s_sub_u32 s43, 0x7ff, s43
s_lshl_b32 s43, s43, 10
buffer_load_ushort v{T+13}, v{T+14}, s[60:63], s43 offen
s_branch K2_LOOP
K2_STAGEC:
s_mov_b32 s41, 16
s_waitcnt vmcnt(0)
s_barrier
s_cmp_gt_u32 s22, 27
s_cbranch_scc1 K2_LOOP
v_lshlrev_b32 v{T+13}, 16, v{T+13}
""")
    P = T+16
    for m, W in enumerate((WG, WU)):
        for i in range(4):
            a(f"v_lshlrev_b32 v{P+8*m+2*i}, 16, v{W+i}")
            a(f"v_and_b32 v{P+8*m+2*i+1}, 0xffff0000, v{W+i}")
    for i in range(16):
        a(f"v_mul_f32 v{P+i}, v{P+i}, v{T+13}")
    a("s_nop 1")
    for i in range(8):
        a(f"v_permlane32_swap_b32 v{P+i}, v{P+8+i}")
    a("s_nop 1")
    for i in range(8):
        a(f"v_add_f32 v{P+i}, v{P+i}, v{P+8+i}")
    a("s_nop 1")
    for i in range(4):
        a(f"v_permlane16_swap_b32 v{P+i}, v{P+4+i}")
    a("s_nop 1")
    for i in range(4):
        a(f"v_add_f32 v{P+i}, v{P+i}, v{P+4+i}")
    for pat in ("row_ror:8", "row_ror:4", "row_ror:2", "row_ror:1"):
        a("s_nop 1")
        for i in range(4):
            a(f"v_add_f32_dpp v{P+i}, v{P+i}, v{P+i} {pat} row_mask:0xf bank_mask:0xf")
    a(f"""
v_lshrrev_b32 v{T+4}, 4, v0
v_lshlrev_b32 v{T+4}, 4, v{T+4}
v_add_u32 v{T+4}, {LDS_FFN:#x}, v{T+4}
ds_write_b128 v{T+4}, {vr(P,4)}
v_and_b32 v{T+5}, 7, v2
v_lshlrev_b32 v{T+5}, 6, v{T+5}
v_lshrrev_b32 v{T+6}, 3, v2
v_lshl_add_u32 v{T+5}, v{T+6}, 2, v{T+5}
v_add_u32 v{T+5}, {LDS_FFN:#x}, v{T+5}
s_waitcnt lgkmcnt(0)
s_barrier
ds_read_b32 v{P}, v{T+5}
ds_read_b32 v{P+1}, v{T+5} offset:32
s_waitcnt lgkmcnt(0)
""")
    for pat in ("quad_perm:[1,0,3,2]", "quad_perm:[2,3,0,1]", "row_half_mirror"):
        a("s_nop 1")
        for i in range(2):
            a(f"v_add_f32_dpp v{P+i}, v{P+i}, v{P+i} {pat} row_mask:0xf bank_mask:0xf")
    a(f"""
v_cvt_pk_bf16_f32 v{P+2}, v{P}, v{P+1}
v_lshlrev_b32 v{P}, 16, v{P+2}
v_and_b32 v{P+1}, 0xffff0000, v{P+2}
v_mul_f32 v{P+2}, {f32bits(-LOG2E):#x}, v{P}
v_exp_f32 v{P+2}, v{P+2}
s_nop 0
v_add_f32 v{P+2}, 1.0, v{P+2}
v_rcp_f32 v{P+2}, v{P+2}
s_nop 0
v_mul_f32 v{P}, v{P}, v{P+2}
v_cvt_pk_bf16_f32 v{P}, v{P}, v{P}
v_and_b32 v{P}, 0xffff0000, v{P}
v_mul_f32 v{P}, v{P}, v{P+1}
v_cvt_pk_bf16_f32 v{P}, v{P}, v{P}
v_and_b32 v{T+13}, 0xffff0000, v{P}
""")
    for i in range(4):
        a(f"v_lshlrev_b32 v{P+2*i}, 16, v{WD+i}")
        a(f"v_and_b32 v{P+2*i+1}, 0xffff0000, v{WD+i}")
    for i in range(8):
        a(f"v_mul_f32 v{P+i}, v{P+i}, v{T+13}")
    a("s_nop 1")
    for i in range(4):
        a(f"v_permlane32_swap_b32 v{P+i}, v{P+4+i}")
    a("s_nop 1")
    for i in range(4):
        a(f"v_add_f32 v{P+i}, v{P+i}, v{P+4+i}")
    a("s_nop 1")
    for i in range(2):
        a(f"v_permlane16_swap_b32 v{P+i}, v{P+2+i}")
    a("s_nop 1")
    for i in range(2):
        a(f"v_add_f32 v{P+i}, v{P+i}, v{P+2+i}")
    a("s_nop 1")
    for i in range(2):
        a(f"v_add_f32_dpp v{P+i}, v{P+i}, v{P+i} row_ror:8 row_mask:0xf bank_mask:0xf")
    a(f"""
v_and_b32 v{T+4}, 8, v2
v_cmp_eq_u32 vcc, 0, v{T+4}
v_and_b32 v{T+5}, 7, v2
v_lshlrev_b32 v{T+5}, 5, v{T+5}
v_cndmask_b32 v{P}, v{P+1}, v{P}, vcc
v_lshl_add_u32 v{T+5}, v{T+6}, 2, v{T+5}
s_lshl_b32 s35, s20, 8
s_add_u32 s35, s35, {WS_Y:#x}
buffer_atomic_add_f32 v{P}, v{T+5}, s[44:47], s35 offen
s_branch K2_LOOP
K2_FIN:
s_nop 1
s_waitcnt lgkmcnt(0)
v_smfmac_f32_32x32x32_bf16 {vr(O,16)}, {vr(VHI,4)}, {vr(SB+8,8)}, v8
s_lshl_b32 s26, s25, 15
s_lshl_b32 s27, s23, 10
s_add_u32 s26, s26, s27
s_add_u32 s26, s26, {WS_OF:#x}
s_nop 11
v_rcp_f32 v{T}, v{O+8}
v_max3_f32 v{T+1}, |v{O}|, |v{O+1}|, |v{O+2}|
v_max3_f32 v{T+2}, |v{O+3}|, |v{O+4}|, |v{O+5}|
v_max3_f32 v{T+1}, |v{O+6}|, |v{O+7}|, v{T+1}
""")
    a(f"""
v_add_f32 v{T+2}, |v{O}|, |v{O+1}|
v_add_f32 v{T+3}, |v{O+2}|, |v{O+3}|
v_add_f32 v{T+4}, |v{O+4}|, |v{O+5}|
v_add_f32 v{T+5}, |v{O+6}|, |v{O+7}|
v_add_f32 v{T+2}, v{T+2}, v{T+3}
v_add_f32 v{T+4}, v{T+4}, v{T+5}
v_add_f32 v{T+2}, v{T+2}, v{T+4}
v_mov_b32 v{T+3}, 0x7f000000
v_cmp_ngt_f32 s[36:37], v{T+3}, v{T+2}
v_mov_b32 v{T+3}, {f32bits(2.0**40):#x}
v_cmp_ngt_f32 vcc, v{T+3}, v{O+8}
s_or_b64 vcc, vcc, s[36:37]
s_cmp_lg_u32 s42, 0
s_cbranch_scc1 K2_STORE
s_cbranch_vccnz K2_FALLBACK
K2_STORE:
""")
    for i in range(8):
        a(f"v_mul_f32 v{O+i}, v{O+i}, v{T}")
    for i in range(4):
        a(f"v_cvt_pk_bf16_f32 v{SA+i}, v{O+2*i}, v{O+2*i+1}")
    a(f"""
buffer_store_dwordx4 {vr(SA,4)}, v3, s[44:47], s26 offen
K2_END:
s_endpgm
K2_FALLBACK:
s_mov_b32 s42, 1
s_mov_b32 s40, 0
v_mov_b32 v13, v3
v_mov_b32 v{T}, 0xff800000
K2_FB_LOOP:
ds_read_b128 {vr(KF,4)}, v13
v_add_u32 v13, 1024, v13
s_waitcnt lgkmcnt(0)
v_mfma_f32_32x32x16_bf16 {vr(SA,16)}, {vr(KF,4)}, v[4:7], 0
s_nop 15
""")
    for i in range(8):
        a(f"v_max3_f32 v{T}, v{T}, v{SA+2*i}, v{SA+2*i+1}")
    a(f"""
s_add_u32 s40, s40, 1
s_cmp_lt_u32 s40, 64
s_cbranch_scc1 K2_FB_LOOP
ds_read_b128 {vr(KF,4)}, v3
s_mov_b32 s40, 0
s_mov_b32 s41, 16
s_waitcnt lgkmcnt(0)
s_branch K2_SETMAX
""")
    return name, 136, 64, (256, 512, LDS_FFN + 512)

def gen_k3(a):
    name = "k3_out_kernel"
    header(a, name)
    a(f"""
s_cmp_ge_u32 s2, 256
s_cbranch_scc1 K3_END
s_load_dwordx2 s[12:13], s[0:1], 88
s_load_dwordx2 s[6:7], s[0:1], 16
s_load_dwordx2 s[4:5], s[0:1], 0
s_load_dwordx2 s[8:9], s[0:1], 72
v_lshrrev_b32 v1, 6, v0
v_and_b32 v2, 63, v0
s_and_b32 s21, s2, 7
v_readfirstlane_b32 s20, v1
s_lshr_b32 s22, s2, 3
s_and_b32 s23, s22, 3
s_lshl_b32 s24, s21, 2
s_add_u32 s24, s24, s23
s_lshr_b32 s25, s22, 2
s_add_u32 s27, s23, s25
s_and_b32 s27, s27, 3
s_cmp_lt_u32 s20, 4
s_cbranch_scc1 K3_COMPUTE
""")
    a(f"""
s_sub_u32 s20, s20, 4
s_and_b32 s28, s20, 1
s_lshl_b32 s30, s24, 1
s_add_u32 s30, s30, s28
s_lshl_b32 s30, s30, 15
s_add_u32 s30, s30, {WS_OF:#x}
s_lshl_b32 s31, s28, 16
s_lshl_b32 s32, s25, 7
s_add_u32 s31, s31, s32
v_lshlrev_b32 v3, 4, v2
v_lshrrev_b32 v4, 3, v2
v_and_b32 v5, 7, v2
v_lshlrev_b32 v6, 1, v4
v_and_b32 v6, 4, v6
v_xor_b32 v5, v5, v6
v_lshlrev_b32 v5, 4, v5
v_lshl_add_u32 v4, v4, 10, v5
s_cmp_lt_u32 s20, 2
s_cselect_b32 s35, s30, s31
s_mov_b32 s34, 0x20000
s_cmovk_i32 s34, 0x2000
s_cselect_b32 s38, 0, 7168
s_mov_b32 s18, 0x80000
s_cmov_b32 s18, {WS_SIZE:#x}
s_cselect_b64 vcc, -1, 0
s_mov_b32 s19, 0x00020000
v_cndmask_b32 v8, v4, v3, vcc
s_lshl_b32 s39, s20, 13
s_mov_b32 s40, 0
s_waitcnt lgkmcnt(0)
s_cmp_lt_u32 s20, 2
s_cselect_b32 s16, s12, s6
s_cselect_b32 s17, s13, s7
K3_LD_LOOP:
s_add_u32 s41, s40, s27
s_and_b32 s41, s41, 3
s_mul_i32 s41, s41, s34
s_add_u32 s41, s41, s35
s_lshl_b32 s42, s40, 15
s_add_u32 m0, s42, s39
""")
    for i in range(8):
        if i == 4:
            a("s_add_u32 m0, m0, 4096\ns_add_u32 s41, s41, 4096")
        elif i == 0:
            a("s_nop 0")
        a(f"buffer_load_dwordx4 v8, s[16:19], s41 offen offset:{(i%4)*1024} lds")
        if i != 7: a("s_add_u32 s41, s41, s38")
    a("""
s_add_u32 s40, s40, 1
s_cmp_lt_u32 s40, 4
s_cbranch_scc1 K3_LD_LOOP
s_waitcnt vmcnt(24)
s_barrier
s_waitcnt vmcnt(16)
s_barrier
s_waitcnt vmcnt(8)
s_barrier
s_waitcnt vmcnt(0)
s_barrier
s_endpgm
""")
    ACC = 64; X = 80; Y = 88; T = 104; FR = 16
    a(f"""
K3_COMPUTE:
s_and_b32 s28, s20, 1
s_lshr_b32 s29, s20, 1
v_lshrrev_b32 v3, 5, v2
v_and_b32 v4, 31, v2
s_lshl_b32 s30, s28, 13
v_lshlrev_b32 v10, 4, v2
v_add_u32 v10, s30, v10
v_bfe_u32 v5, v2, 2, 2
v_lshl_add_u32 v6, v3, 2, v5
v_lshlrev_b32 v6, 7, v6
v_lshrrev_b32 v5, 1, v5
v_xor_b32 v5, s29, v5
v_lshl_add_u32 v6, v5, 6, v6
v_and_b32 v5, 1, v2
v_lshl_add_u32 v6, v5, 5, v6
v_bfe_u32 v5, v2, 4, 1
v_lshl_add_u32 v6, v5, 4, v6
v_bfe_u32 v5, v2, 1, 1
v_lshl_add_u32 v6, v5, 3, v6
v_add_u32 v11, 0x4000, v6
s_lshl_b32 s30, s24, 6
s_lshl_b32 s31, s28, 5
s_add_u32 s30, s30, s31
v_add_u32 v12, s30, v4
s_lshl_b32 s31, s25, 6
s_lshl_b32 s32, s29, 5
s_add_u32 s31, s31, s32
v_lshl_add_u32 v13, v3, 4, s31
v_lshlrev_b32 v14, 10, v12
v_lshl_add_u32 v14, v13, 1, v14
v_lshlrev_b32 v15, 2, v12
v_lshlrev_b32 v13, 2, v13
v_lshlrev_b32 v9, 2, v2
s_waitcnt lgkmcnt(0)
""")
    srd(a, 44, 12, WS_SIZE)
    srd(a, 48, 4, 2048*1024)
    srd(a, 52, 8, 2048*1024)
    a(f"""
s_mov_b32 s33, {WS_RK:#x}
s_mov_b32 s34, {WS_G:#x}
s_mov_b32 s35, {WS_Y:#x}
buffer_load_dword v{T}, v9, s[44:47], s33 offen
buffer_load_dword v{T+1}, v15, s[44:47], s34 offen
buffer_load_dwordx4 {vr(X,4)}, v14, s[48:51], 0 offen
buffer_load_dwordx4 {vr(X+4,4)}, v14, s[48:51], 0 offen offset:16
""")
    for i in range(4):
        a(f"buffer_load_dwordx4 {vr(Y+4*i,4)}, v13, s[44:47], s35 offen offset:{16*i}")
    for i in range(8):
        a(f"v_mov_b64 {vr(ACC+2*i,2)}, 0")
    a("""
s_mov_b32 s40, 0
K3_LOOP:
s_barrier
""")
    def reads(hh):
        b = FR + 8*(hh % 4)
        a(f"ds_read_b128 {vr(b,4)}, v10 offset:{hh*1024}")
        a(f"ds_read_b64_tr_b16 {vr(b+4,2)}, v11 offset:{hh*2048}")
        a(f"ds_read_b64_tr_b16 {vr(b+6,2)}, v11 offset:{hh*2048+1024}")
    def mf(hh):
        b = FR + 8*(hh % 4)
        a(f"v_mfma_f32_32x32x16_bf16 {vr(ACC,16)}, {vr(b+4,4)}, {vr(b,4)}, {vr(ACC,16)}")
    for hh in range(4): reads(hh)
    for hh in range(8):
        rem = min(3, 7-hh)
        a(f"s_waitcnt lgkmcnt({3*rem})")
        mf(hh)
        if hh + 4 < 8: reads(hh+4)
    a(f"""
v_add_u32 v10, 0x8000, v10
v_add_u32 v11, 0x8000, v11
s_add_u32 s40, s40, 1
s_cmp_lt_u32 s40, 4
s_cbranch_scc1 K3_LOOP
s_waitcnt vmcnt(0)
""")
    umax_reduce64(a, T, T+2)
    a(f"""
v_and_b32 v{T+2}, 0x7ff, v{T}
v_sub_u32 v{T+2}, 0x7ff, v{T+2}
v_cmp_eq_u32 vcc, v{T+2}, v12
v_and_b32 v{T}, 0xffff0000, v{T}
v_ashrrev_i32 v{T+3}, 31, v{T}
v_not_b32 v{T+3}, v{T+3}
v_or_b32 v{T+3}, 0x80000000, v{T+3}
v_xor_b32 v{T}, v{T}, v{T+3}
v_and_b32 v{T}, 0xffff0000, v{T}
v_mul_f32 v{T}, {f32bits(-LOG2E):#x}, v{T}
v_exp_f32 v{T}, v{T}
v_sub_f32 v{T+4}, 1.0, v{T+1}
v_add_f32 v{T}, 1.0, v{T}
v_rcp_f32 v{T}, v{T}
s_nop 0
v_cndmask_b32 v{T}, 0, v{T}, vcc
""")
    for i in range(8):
        a(f"v_lshlrev_b32 v{FR+2*i}, 16, v{X+i}")
        a(f"v_and_b32 v{FR+2*i+1}, 0xffff0000, v{X+i}")
    a("s_cbranch_vccz K3_NOSEL")
    a("s_and_saveexec_b64 s[36:37], vcc")
    for i in range(16):
        a(f"v_fmac_f32 v{FR+i}, v{Y+i}, v{T}")
    a("s_mov_b64 exec, s[36:37]")
    a("K3_NOSEL:")
    for i in range(16):
        a(f"v_mul_f32 v{FR+i}, v{FR+i}, v{T+4}")
    for i in range(16):
        a(f"v_fmac_f32 v{FR+i}, v{ACC+i}, v{T+1}")
    for i in range(8):
        a(f"v_cvt_pk_bf16_f32 v{X+i}, v{FR+2*i}, v{FR+2*i+1}")
    a(f"""
buffer_store_dwordx4 {vr(X,4)}, v14, s[52:55], 0 offen
buffer_store_dwordx4 {vr(X+4,4)}, v14, s[52:55], 0 offen offset:16
K3_END:
s_endpgm
""")
    return name, 112, 64, (256, 512, 131072)

def main():
    body = Asm()
    ks = []
    kds = ""
    for g in (gen_k1, gen_k2, gen_k3):
        name, vg, sg, (grid, block, lds) = g(body)
        ks.append(f"; @launch kernel={name} grid=({grid},1,1) block=({block},1,1) lds={lds}")
        kds += kd(name, vg, sg)
    out = "; generated by gen/gen.py (own generator script)\n" + "\n".join(ks) + "\n"
    out += '.amdgcn_target "amdgcn-amd-amdhsa--gfx950"\n.text\n' + body.text() + kds
    path = sys.argv[1] if len(sys.argv) > 1 else f"cdna_kernels/{NAME}.s"
    open(path, "w").write(out)

main()
```

```python
import math, struct, sys, os

NAME = "gated_mix__mha_block__moe_arch_mod__prompt"
STAMP = bool(os.environ.get("STAMP"))
EXP = int(os.environ.get("EXP", "0"))

WS_QF = 0x000000
WS_KV = 0x200000
WS_OF = 0x600000
WS_G  = 0x800000
WS_Y  = 0x803000
WS_F1 = 0x810000
WS_F2 = 0x812000
WS_F3 = 0x815000
WS_KG = 0x816000
WS_E  = 0x818000
WS_SIZE = 0x10000000
POLL_MAX = 1 << 18

L_FG = 0x20000; L_FU = 0x22000; L_FD = 0x24000; L_XS = 0x26000
L_LS = 0x26800
L_MISC = 0x27000
L_OX = 0x14000
WO_SLOTS = [0x0000, 0x4000, 0x10000, 0x8000]
OF_SLOTS = [0xC000, 0x18000, 0x1C000, 0x20000]
LDS_BYTES = 0x28000

def f32bits(x): return struct.unpack("<I", struct.pack("<f", x))[0]
LOG2E = 1.4426950408889634
QSCALE = 0.25 * LOG2E

class Asm:
    def __init__(self): self.l = []
    def __call__(self, s):
        for line in s.strip("\n").split("\n"):
            line = line.strip()
            if not line: continue
            if line.endswith(":") : self.l.append(line)
            else: self.l.append("    " + line)
    def text(self): return "\n".join(self.l) + "\n"

def vr(a, n): return f"v[{a}:{a+n-1}]"
def srd(a, d, lo, nbytes):
    a(f"s_mov_b32 s{d}, s{lo}\ns_mov_b32 s{d+1}, s{lo+1}\ns_mov_b32 s{d+2}, {nbytes:#x}\ns_mov_b32 s{d+3}, 0x00020000")

NST = 14
SL1 = int(os.environ.get('SL1', '4')); SL2 = int(os.environ.get('SL2', '4'))
PQ = int(os.environ.get('PQ', '5')); PS = int(os.environ.get('PS', '11'))
def stamp(a, slot):
    if not STAMP: return
    a(f"s_memrealtime s[82:83]\ns_waitcnt lgkmcnt(0)\ns_mov_b32 s{86+slot}, s82")
def stampc(a, slot):
    if not STAMP: return
    a(f"s_memtime s[82:83]\ns_waitcnt lgkmcnt(0)\ns_sub_u32 s{86+slot}, s82, s{86+slot}")
def endpgm(a):
    if STAMP:
        a(f"""s_waitcnt vmcnt(0)
s_memrealtime s[82:83]
s_waitcnt lgkmcnt(0)
s_mov_b64 exec, 1
s_lshl_b32 s79, s2, 3
s_add_u32 s79, s79, s27
s_lshl_b32 s79, s79, 6
s_add_u32 s79, s79, 0x1000000
v_mov_b32 v249, s79
v_mov_b32 v232, s80
v_mov_b32 v233, s82""")
        for i in range(NST): a(f"v_mov_b32 v{234+i}, s{86+i}")
        for i in range(4): a(f"global_store_dwordx4 v249, {vr(232+4*i,4)}, s[24:25] offset:{16*i}")
    a("s_endpgm")

def umax_reduce64(a, v, t):
    for pat in ("quad_perm:[1,0,3,2]", "quad_perm:[2,3,0,1]", "row_half_mirror", "row_mirror"):
        a(f"s_nop 1\nv_max_u32_dpp v{v}, v{v}, v{v} {pat} row_mask:0xf bank_mask:0xf")
    for sw in ("v_permlane16_swap_b32", "v_permlane32_swap_b32"):
        a(f"v_mov_b32 v{t}, v{v}\ns_nop 1\n{sw} v{t}, v{v}\ns_nop 1\nv_max_u32 v{v}, v{v}, v{t}")

def gen(a):
    name = NAME + "_kernel"
    a.l.append(f".globl {name}\n.p2align 8\n.type {name},@function\n{name}:")
    if STAMP:
        a("s_memrealtime s[80:81]")
        for i in range(NST): a(f"s_mov_b32 s{86+i}, 0")
    a("""
s_cmp_ge_u32 s2, 256
s_cbranch_scc1 L_EXIT
s_load_dwordx4 s[4:7], s[0:1], 0
s_load_dwordx2 s[24:25], s[0:1], 88
s_load_dwordx2 s[8:9], s[0:1], 16
s_load_dwordx8 s[12:19], s[0:1], 32
s_load_dwordx4 s[20:23], s[0:1], 64
v_lshrrev_b32 v1, 6, v0
v_and_b32 v2, 63, v0
s_and_b32 s28, s2, 7
v_readfirstlane_b32 s27, v1
s_lshr_b32 s29, s2, 3
s_lshr_b32 s48, s28, 1
s_lshl_b32 s48, s48, 3
s_lshr_b32 s31, s29, 2
s_add_u32 s48, s48, s31
s_and_b32 s30, s29, 3
s_and_b32 s49, s28, 1
s_lshl_b32 s49, s49, 2
s_add_u32 s49, s49, s30
s_lshl_b32 s50, s30, 1
s_add_u32 s50, s50, s31
s_and_b32 s50, s50, 7
v_lshlrev_b32 v3, 4, v2
s_cmp_lt_u32 s27, 4
s_cbranch_scc1 P1_COMPUTE
""")
    a("""
s_sub_u32 s51, s27, 4
s_lshl_b32 s57, s48, 16
s_sub_u32 s58, s51, 1
s_lshl_b32 s58, s58, 10
s_lshl_b32 s59, s49, 7
s_add_u32 s58, s58, s59
s_cmp_eq_u32 s51, 0
s_movk_i32 s52, 3072
s_cmovk_i32 s52, 1024
s_cselect_b32 s53, 3, 0
s_cselect_b32 s54, 0, 4
s_cselect_b32 s55, 64, 0
s_mov_b32 s56, 0x30000
s_cmovk_i32 s56, 128
s_mov_b32 s38, 0x180000
s_cmov_b32 s38, 0x200000
s_cselect_b32 s57, s57, s58
s_mov_b32 s39, 0x00020000
v_lshrrev_b32 v4, 3, v2
v_and_b32 v5, 7, v2
v_lshrrev_b32 v6, 1, v4
v_and_b32 v6, s53, v6
v_lshlrev_b32 v7, 1, v4
v_and_b32 v7, s54, v7
v_xor_b32 v5, v5, v6
v_xor_b32 v5, v5, v7
v_lshlrev_b32 v5, 4, v5
v_mul_lo_u32 v4, v4, s52
v_add3_u32 v8, v4, v5, s57
v_xor_b32 v9, s55, v8
s_lshl_b32 s60, s52, 3
s_sub_u32 s60, s60, 1024
s_lshl_b32 s61, s51, 13
s_mov_b32 s62, 0
s_cmp_eq_u32 s51, 0
s_waitcnt lgkmcnt(0)
s_cselect_b32 s36, s4, s6
s_cselect_b32 s37, s5, s7
P1_LD_LOOP:
s_cmp_lt_u32 s62, 3
s_cbranch_scc1 P1_LD_ISSUE
s_waitcnt vmcnt(16)
s_barrier
P1_LD_ISSUE:
s_add_u32 s63, s62, s50
s_and_b32 s63, s63, 7
s_and_b32 s64, s62, 3
s_lshl_b32 s64, s64, 15
s_add_u32 m0, s64, s61
s_mul_i32 s63, s63, s56
""")
    for i in range(8):
        if i == 4: a("s_add_u32 m0, m0, 4096\ns_add_u32 s63, s63, 4096")
        a(f"buffer_load_dwordx4 v{8+(i&1)}, s[36:39], s63 offen offset:{(i%4)*1024} lds")
        if i != 7: a("s_add_u32 s63, s63, s60")
    a(f"""
s_add_u32 s62, s62, 1
s_cmp_lt_u32 s62, 8
s_cbranch_scc1 P1_LD_LOOP
s_mov_b32 s65, {WS_E:#x}
s_load_dword s26, s[24:25], s65
""")
    srd(a, 32, 24, WS_SIZE)
    a("""
s_waitcnt vmcnt(16)
s_barrier
s_waitcnt vmcnt(8)
s_barrier
s_waitcnt vmcnt(0) lgkmcnt(0)
s_barrier
s_mul_i32 s26, s26, 0x9e3779b1
s_add_u32 s26, s26, 0x7f4a7c15
s_cmp_lg_u32 s51, 1
s_cbranch_scc1 P1_DONE
""")
    X = 16; WR = 48; WGT = 52; P = 56
    a("P1_RG:")
    srd(a, 36, 4, 0x200000)
    srd(a, 40, 12, 1024)
    srd(a, 44, 20, 1024)
    a("""
s_lshl_b32 s52, s48, 3
s_add_u32 s52, s52, s49
s_lshl_b32 s53, s52, 13
s_add_u32 s54, s53, 4096
""")
    a(f"buffer_load_dwordx4 {vr(WR,4)}, v3, s[40:43], 0 offen")
    a(f"buffer_load_dwordx4 {vr(WGT,4)}, v3, s[44:47], 0 offen")
    for i in range(8):
        a(f"buffer_load_dwordx4 {vr(X+4*i,4)}, v3, s[36:39], s{53 if i < 4 else 54} offen offset:{(i%4)*1024}")
    for i in range(8): a(f"v_mov_b64 {vr(P+2*i,2)}, 0")
    a(f"""
s_cmp_lg_u32 s2, 0
s_cbranch_scc1 P1_RG_NOZ
s_mov_b32 s55, {WS_Y:#x}
buffer_store_dwordx4 {vr(P,4)}, v3, s[32:35], s55 offen sc1
buffer_store_dwordx4 {vr(P,4)}, v3, s[32:35], s55 offen offset:1024 sc1
P1_RG_NOZ:
s_waitcnt vmcnt(0)
""")
    for k in range(4):
        for i in range(8):
            a(f"v_dot2c_f32_bf16 v{P+i}, v{X+4*i+k}, v{WR+k}")
            a(f"v_dot2c_f32_bf16 v{P+8+i}, v{X+4*i+k}, v{WGT+k}")
    a("s_nop 2")
    for i in range(8): a(f"v_permlane32_swap_b32 v{P+i}, v{P+8+i}")
    a("s_nop 1")
    for i in range(8): a(f"v_add_f32 v{P+i}, v{P+i}, v{P+8+i}")
    a("s_nop 1")
    for i in range(4): a(f"v_permlane16_swap_b32 v{P+i}, v{P+4+i}")
    a("s_nop 1")
    for i in range(4): a(f"v_add_f32 v{P+i}, v{P+i}, v{P+4+i}")
    for pat in ("row_ror:8", "row_ror:4", "row_ror:2", "row_ror:1"):
        a("s_nop 1")
        for i in range(4): a(f"v_add_f32_dpp v{P+i}, v{P+i}, v{P+i} {pat} row_mask:0xf bank_mask:0xf")
    a(f"""
v_and_b32 v4, 1, v2
v_cmp_eq_u32 vcc, 0, v4
v_and_b32 v4, 2, v2
v_cmp_eq_u32 s[56:57], 0, v4
v_cndmask_b32 v{P}, v{P+1}, v{P}, vcc
v_cndmask_b32 v{P+2}, v{P+3}, v{P+2}, vcc
v_cndmask_b32 v{P}, v{P+2}, v{P}, s[56:57]
v_cvt_pk_bf16_f32 v{P}, v{P}, v{P}
v_and_b32 v{P}, 0xffff0000, v{P}
v_mul_f32 v5, {f32bits(-LOG2E):#x}, v{P}
v_exp_f32 v5, v5
v_ashrrev_i32 v6, 31, v{P}
v_or_b32 v6, 0x80000000, v6
v_add_f32 v5, 1.0, v5
v_rcp_f32 v5, v5
v_xor_b32 v6, v{P}, v6
v_and_b32 v6, 0xffff0000, v6
v_and_b32 v4, 3, v2
v_bfe_u32 v7, v2, 4, 1
v_lshl_add_u32 v4, v7, 2, v4
s_lshl_b32 s53, s52, 3
v_add_u32 v4, s53, v4
v_sub_u32 v7, 0x7ff, v4
v_or_b32 v6, v6, v7
v_cvt_pk_bf16_f32 v5, v5, v5
v_and_b32 v5, 0xffff0000, v5
v_lshlrev_b32 v4, 2, v4
s_mov_b32 s53, {WS_G:#x}
s_mov_b32 exec_lo, 0
buffer_store_dword v5, v4, s[32:35], s53 offen sc1
v_mov_b32 v6, 0
s_mov_b32 exec_lo, -1
""")
    umax_reduce64(a, 6, 7)
    a(f"""
v_mov_b32 v7, s26
s_lshl_b32 s53, s52, 3
s_add_u32 s53, s53, {WS_KG:#x}
v_mov_b32 v4, 0
s_waitcnt vmcnt(0)
s_mov_b64 exec, 1
buffer_store_dwordx2 v[6:7], v4, s[32:35], s53 offen sc1
s_mov_b64 exec, -1
s_branch P1_DONE
""")
    AQ, AK, AV, FR = 64, 80, 96, 128
    a(f"""
P1_COMPUTE:
s_and_b32 s51, s27, 1
s_lshr_b32 s52, s27, 1
v_lshrrev_b32 v4, 5, v2
v_and_b32 v5, 31, v2
v_bfe_u32 v6, v2, 1, 3
v_xor_b32 v6, v6, v4
v_lshlrev_b32 v6, 4, v6
s_lshl_b32 s53, s51, 12
v_lshl_add_u32 v6, v5, 7, v6
v_add_u32 v10, s53, v6
v_xor_b32 v11, 32, v10
v_xor_b32 v12, 64, v10
v_xor_b32 v13, 0x60, v10
v_bfe_u32 v6, v2, 2, 2
v_lshl_add_u32 v7, v4, 3, v6
v_lshlrev_b32 v7, 7, v7
v_lshrrev_b32 v6, 1, v6
v_xor_b32 v6, s52, v6
v_lshl_add_u32 v7, v6, 6, v7
v_bfe_u32 v6, v2, 4, 1
v_lshl_add_u32 v7, v6, 5, v7
v_and_b32 v6, 3, v2
v_lshl_add_u32 v7, v6, 3, v7
v_add_u32 v14, 0x2000, v7
""")
    for i in range(24): a(f"v_mov_b64 {vr(AQ+2*i,2)}, 0")
    for i in range(16): a(f"v_mov_b64 {vr(FR+32+2*i,2)}, 0")
    a(f"""
s_mov_b32 s65, {WS_E:#x}
s_mov_b32 s62, 0
v_mov_b32 v21, 0
s_waitcnt lgkmcnt(0)
""")
    srd(a, 32, 24, WS_SIZE)
    a("buffer_load_dword v21, v21, s[32:35], s65 offen")
    stamp(a, 0)
    a("""
P1_LOOP:
s_and_b32 s64, s62, 3
s_lshl_b32 s64, s64, 15
v_add_u32 v16, s64, v10
v_add_u32 v20, s64, v14
v_add_u32 v17, s64, v11
v_add_u32 v18, s64, v12
v_add_u32 v19, s64, v13
s_barrier
""")
    if STAMP:
        a("s_cmp_lg_u32 s62, 0\ns_cbranch_scc1 P1_ST1"); stamp(a, 1); a("P1_ST1:")
    def reads(s):
        b = FR + 16*s
        r = [f"ds_read_b128 {vr(b,4)}, v{16+s}"]
        for sec in range(3):
            for jj in range(2):
                r.append(f"ds_read_b64_tr_b16 {vr(b+4+4*sec+2*jj,2)}, v20 offset:{sec*8192+s*2048+jj*512}")
        return r
    def mfmas(s):
        b = FR + 16*s
        X_ = vr(b,4); WQ = vr(b+4,4); WK = vr(b+8,4); WV = vr(b+12,4)
        return [f"v_mfma_f32_32x32x16_bf16 {vr(AK,16)}, {WK}, {X_}, {vr(AK,16)}",
                f"v_mfma_f32_32x32x16_bf16 {vr(AV,16)}, {X_}, {WV}, {vr(AV,16)}",
                f"v_mfma_f32_32x32x16_bf16 {vr(AQ,16)}, {WQ}, {X_}, {vr(AQ,16)}"]
    def inter(r, m):
        for i in range(3):
            a(m[i])
            for x in r[i*2:(i+1)*2 + (1 if i == 2 else 0)]: a(x)
    inter(reads(0), mfmas(2)); inter(reads(1), mfmas(3))
    a("s_waitcnt lgkmcnt(7)"); inter(reads(2), mfmas(0))
    a("s_waitcnt lgkmcnt(7)"); inter(reads(3), mfmas(1))
    a("""
s_add_u32 s62, s62, 1
s_cmp_lt_u32 s62, 8
s_waitcnt lgkmcnt(0)
s_cbranch_scc1 P1_LOOP
""")
    for x in mfmas(2) + mfmas(3): a(x)
    a(f"""
s_waitcnt vmcnt(0)
v_readfirstlane_b32 s26, v21
s_lshl_b32 s53, s48, 1
s_add_u32 s53, s53, s51
s_lshl_b32 s54, s49, 2
s_lshl_b32 s55, s52, 1
s_add_u32 s54, s54, s55
s_lshl_b32 s56, s53, 10
s_lshl_b32 s57, s54, 16
s_add_u32 s57, s57, s56
s_add_u32 s58, s57, 0x10000
s_lshl_b32 s59, s57, 1
s_add_u32 s59, s59, {WS_KV:#x}
s_add_u32 s60, s59, 0x20000
s_mov_b32 s64, {f32bits(QSCALE):#x}
s_mov_b32 s65, {f32bits(QSCALE):#x}
s_mul_i32 s26, s26, 0x9e3779b1
s_add_u32 s26, s26, 0x7f4a7c15
v_and_b32 v6, 0x33, v2
v_and_b32 v7, 4, v2
v_lshl_or_b32 v6, v7, 1, v6
v_and_b32 v7, 8, v2
v_lshrrev_b32 v7, 1, v7
v_or_b32 v6, v6, v7
v_lshlrev_b32 v22, 4, v6
v_and_b32 v6, 0x2f, v2
v_lshlrev_b32 v6, 4, v6
v_bfe_u32 v7, v2, 4, 1
v_lshl_add_u32 v23, v7, 17, v6
""")
    for i in range(8): a(f"v_cvt_pk_bf16_f32 v{136+i}, v{AK+2*i}, v{AK+1+2*i}")
    a(f"buffer_store_dwordx4 v[136:139], v22, s[32:35], s59 offen sc1")
    a(f"buffer_store_dwordx4 v[140:143], v22, s[32:35], s60 offen sc1")
    for i in range(8): a(f"v_cvt_pk_bf16_f32 v{144+i}, v{AV+2*i}, v{AV+1+2*i}")
    a(f"buffer_store_dwordx4 v[144:147], v23, s[32:35], s59 offen offset:1024 sc1")
    a(f"buffer_store_dwordx4 v[148:151], v23, s[32:35], s59 offen offset:1280 sc1")
    for i in range(8): a(f"v_pk_mul_f32 {vr(AQ+2*i,2)}, {vr(AQ+2*i,2)}, s[64:65]")
    for i in range(8): a(f"v_cvt_pk_bf16_f32 v{128+i}, v{AQ+2*i}, v{AQ+1+2*i}")
    a(f"buffer_store_dwordx4 v[128:131], v3, s[32:35], s57 offen sc1")
    a(f"buffer_store_dwordx4 v[132:135], v3, s[32:35], s58 offen sc1")
    stamp(a, 2)
    a(f"""
s_lshr_b32 s54, s54, 1
s_lshl_b32 s54, s54, 6
s_add_u32 s54, s54, s53
s_lshl_b32 s54, s54, 2
s_add_u32 s54, s54, {WS_F1:#x}
v_mov_b32 v6, s26
v_mov_b32 v7, 0
s_waitcnt vmcnt(0)
s_mov_b64 exec, 1
buffer_store_dword v6, v7, s[32:35], s54 offen sc1
s_mov_b64 exec, -1
""")
    stamp(a, 3)
    Q0, Q1, S0, S1, O0, O1, M0, M1, FA, FB, T = 4, 8, 16, 32, 48, 64, 80, 96, 112, 124, 136
    FW = 3
    a(f"""
P1_DONE:
s_lshl_b32 s48, s28, 2
s_add_u32 s48, s48, s30
s_and_b32 s49, s27, 3
s_lshr_b32 s50, s27, 2
s_lshl_b32 s51, s31, 3
s_lshl_b32 s52, s49, 1
s_add_u32 s51, s51, s52
s_lshl_b32 s52, s48, 16
s_lshl_b32 s53, s51, 10
s_add_u32 s52, s52, s53
s_lshl_b32 s54, s48, 17
s_add_u32 s54, s54, {WS_KV:#x}
s_lshl_b32 s55, s50, 16
s_lshl_b32 s56, s49, 10
s_add_u32 s56, s56, s55
s_lshl_b32 s57, s31, 14
s_add_u32 s57, s57, s56
s_and_b32 s57, s57, 0x1ffff
s_mov_b32 m0, s56
v_add_u32 v13, s55, v3
v_mov_b32 v12, 0xdddddddd
v_and_b32 v14, 27, v2
v_cmp_eq_u32 vcc, 16, v14
v_mov_b32 v15, 0x3f803f80
s_mov_b32 s58, 0xffff
s_mov_b32 s59, 0xffff
v_cndmask_b32 v14, 0, v15, vcc
v_mov_b32 v15, v14
""")
    for F in (FA, FB):
        for i in range(4): a(f"v_mov_b64 {vr(F+4+2*i,2)}, v[14:15]")
    for i in range(16): a(f"v_mov_b64 {vr(O0+2*i,2)}, 0")
    a(f"""
s_min_u32 s60, s29, 27
s_mul_i32 s61, s28, 28
s_add_u32 s60, s60, s61
v_mul_u32_u24 v{T}, 3584, v2
s_mul_i32 s61, s27, {64*3584}
s_lshl_b32 s62, s60, 4
s_add_u32 s61, s61, s62
s_lshl_b32 s62, s60, 13
s_lshl_b32 s63, s27, 10
s_add_u32 s62, s62, s63
""")
    srd(a, 36, 14, 512*3584); srd(a, 40, 16, 512*3584); srd(a, 44, 18, 512*3584)
    a(f"""
s_cmp_lg_u32 s27, 0
s_cbranch_scc1 P1_POLLED
s_lshr_b32 s64, s48, 1
s_lshl_b32 s64, s64, 8
s_add_u32 s64, s64, {WS_F1:#x}
v_lshlrev_b32 v4, 2, v2
s_mov_b32 s65, {POLL_MAX}
P1_POLL:
s_sleep {SL1}
buffer_load_dword v5, v4, s[32:35], s64 offen sc1
s_sub_u32 s65, s65, 1
s_cbranch_scc1 P1_POLLED
s_waitcnt vmcnt(0)
v_cmp_ne_u32 vcc, s26, v5
s_cbranch_vccnz P1_POLL
P1_POLLED:
s_barrier
""")
    stamp(a, 4)
    def dma_group():
        return ["s_add_u32 s64, s54, s57", "s_add_u32 s57, s57, 4096", "s_and_b32 s57, s57, 0x1ffff",
                "buffer_load_dwordx4 v3, s[32:35], s64 offen sc1 lds", "s_add_u32 m0, m0, 4096"]
    a(f"buffer_load_dwordx4 {vr(Q0,4)}, v3, s[32:35], s52 offen sc1")
    a(f"buffer_load_dwordx4 {vr(Q1,4)}, v3, s[32:35], s52 offen offset:1024 sc1")
    for g in range(3):
        for x in dma_group(): a(x)
    a(f"""
s_waitcnt vmcnt(0)
s_barrier
ds_read_b128 {vr(FB,4)}, v3
ds_read_b128 {vr(FA,4)}, v13
s_mov_b64 exec, s[58:59]
ds_read_b128 {vr(FA+4,4)}, v13 offset:1024
ds_read_b128 {vr(FA+8,4)}, v13 offset:1280
s_mov_b64 exec, -1
s_waitcnt lgkmcnt(3)
v_mfma_f32_32x32x16_bf16 {vr(S0,16)}, {vr(FB,4)}, {vr(Q0,4)}, 0
v_mfma_f32_32x32x16_bf16 {vr(S1,16)}, {vr(FB,4)}, {vr(Q1,4)}, 0
s_nop 10
""")
    stamp(a, 5)
    for S, M, t in ((S0, M0, T+1), (S1, M1, T+3)):
        a(f"v_max3_f32 v{t}, v{S}, v{S+1}, v{S+2}")
        for i in range(6): a(f"v_max3_f32 v{t}, v{t}, v{S+3+2*i}, v{S+4+2*i}")
        a(f"v_max_f32 v{t}, v{t}, v{S+15}\nv_mov_b32 v{t+1}, v{t}\ns_nop 1\nv_permlane32_swap_b32 v{t+1}, v{t}\ns_nop 1")
        a(f"v_max_f32 v{t}, v{t}, v{t+1}\nv_mul_f32 v{M}, -1.0, v{t}\nv_mul_f32 v{M+1}, -1.0, v{t}")
        for i in range(1, 8): a(f"v_mov_b64 {vr(M+2*i,2)}, {vr(M,2)}")
        if S == S0:
            a(f"s_nop 0\ns_waitcnt lgkmcnt(0)\nv_mfma_f32_32x32x16_bf16 {vr(S0,16)}, {vr(FA,4)}, {vr(Q0,4)}, {vr(M0,16)}")
    def smf(o, v, p): return f"v_smfmac_f32_32x32x32_bf16 {vr(o,16)}, {vr(v,4)}, {vr(p,8)}, v12"
    def qk(d, k, q, mn): return f"v_mfma_f32_32x32x16_bf16 {vr(d,16)}, {vr(k,4)}, {vr(q,4)}, {vr(mn,16)}"
    def iteration(first, peeled, extras):
        ex = list(extras)
        for kt in range(4):
            F = FA if kt % 2 == 0 else FB
            G = FB if kt % 2 == 0 else FA
            for q in range(2):
                cur, nxt = (S0, S1) if q == 0 else (S1, S0)
                Oc, On = (O0, O1) if q == 0 else (O1, O0)
                for i in range(16):
                    if i == 2:
                        if not (first and kt == 0 and q == 0):
                            a(smf(On, (G if q == 0 else F) + 8, nxt + 8))
                        if q == 0:
                            o = (kt+1)*2048
                            a(f"ds_read_b128 {vr(G,4)}, v13 offset:{o}")
                            a("s_mov_b64 exec, s[58:59]")
                            a(f"ds_read_b128 {vr(G+4,4)}, v13 offset:{o+1024}")
                            a(f"ds_read_b128 {vr(G+8,4)}, v13 offset:{o+1280}")
                            a("s_mov_b64 exec, -1")
                    if i == PQ:
                        if q == 1: a("s_waitcnt lgkmcnt(0)")
                        a(qk(nxt, F if q == 0 else G, Q1 if q == 0 else Q0, M1 if q == 0 else M0))
                    if i == PS:
                        a(smf(Oc, F + 4, cur))
                        if kt == 3 and q == 1:
                            a("v_add_u32 v13, 0x2000, v13")
                            if not peeled: a("s_add_u32 s66, s66, 1\ns_cmp_lg_u32 s66, s67")
                    if i in (8, 14) and ex:
                        for x in ex.pop(0): a(x)
                    a(f"v_exp_f32 v{cur+i}, v{cur+i}")
        assert not ex
    ffn_dma = [[f"s_add_u32 m0, s63, {L_FG:#x}", "s_nop 0", f"buffer_load_dwordx4 v{T}, s[36:39], s61 offen lds"],
               [f"s_add_u32 m0, s63, {L_FU:#x}", "s_nop 0", f"buffer_load_dwordx4 v{T}, s[40:43], s61 offen lds"],
               [f"s_add_u32 m0, s63, {L_FD:#x}", "s_nop 0", f"buffer_load_dwordx4 v3, s[44:47], s62 offen lds"]]
    iteration(True, True, [dma_group() for _ in range(6)])
    a(f"""
s_waitcnt vmcnt(0)
s_barrier
""")
    stamp(a, 6)
    stampc(a, 7)
    iteration(False, True, [dma_group() for _ in range(7)] + [[]]*3 + sum([[x, []] for x in ffn_dma], []))
    KG = T+8
    a(f"""
s_mov_b32 s66, 2
s_mov_b32 s67, 4
s_cmp_lg_u32 s27, {FW}
s_cbranch_scc1 P2_LOOP
s_mov_b32 s67, 3
s_mov_b32 s68, {POLL_MAX}
P2_KEYLD:
s_mov_b32 s64, {WS_KG:#x}
buffer_load_dwordx4 {vr(KG,4)}, v3, s[32:35], s64 offen sc1
buffer_load_dwordx4 {vr(KG+4,4)}, v3, s[32:35], s64 offen offset:1024 sc1
s_cmp_eq_u32 s66, 3
s_cbranch_scc1 P2_KEYS
P2_LOOP:
""")
    iteration(False, False, [])
    a(f"""
s_cbranch_scc1 P2_LOOP
s_cmp_eq_u32 s66, 8
s_cbranch_scc1 P2_FIN
s_cmp_eq_u32 s66, 4
s_cbranch_scc1 P2_MID
P2_KEYS:
s_waitcnt vmcnt(0)
v_cmp_ne_u32 vcc, s26, v{KG+1}
v_cmp_ne_u32 s[64:65], s26, v{KG+3}
s_or_b64 vcc, vcc, s[64:65]
v_cmp_ne_u32 s[64:65], s26, v{KG+5}
s_or_b64 vcc, vcc, s[64:65]
v_cmp_ne_u32 s[64:65], s26, v{KG+7}
s_or_b64 vcc, vcc, s[64:65]
s_sub_u32 s68, s68, 1
s_cbranch_scc1 P2_KEYOK
s_cbranch_vccnz P2_KEYLD
P2_KEYOK:
v_max3_u32 v{KG}, v{KG}, v{KG+2}, v{KG+4}
v_max_u32 v{KG}, v{KG}, v{KG+6}
""")
    umax_reduce64(a, KG, KG+1)
    srd(a, 36, 4, 0x200000)
    a(f"""
v_readfirstlane_b32 s64, v{KG}
v_mov_b32 v{KG+1}, {L_MISC:#x}
s_mov_b32 s67, 4
ds_write_b32 v{KG+1}, v{KG}
s_and_b32 s64, s64, 0x7ff
s_sub_u32 s64, 0x7ff, s64
s_mov_b32 m0, {L_XS:#x}
s_lshl_b32 s64, s64, 10
buffer_load_dwordx4 v3, s[36:39], s64 offen lds
s_branch P2_LOOP
P2_MID:
s_mov_b32 s67, 8
""")
    srd(a, 36, 8, 0x80000)
    a(f"""
s_add_u32 s69, s30, s31
s_and_b32 s69, s69, 3
v_lshrrev_b32 v{T+1}, 3, v2
v_and_b32 v{T+2}, 7, v2
v_lshlrev_b32 v{T+3}, 1, v{T+1}
v_and_b32 v{T+3}, 4, v{T+3}
v_xor_b32 v{T+2}, v{T+2}, v{T+3}
v_lshlrev_b32 v{T+2}, 4, v{T+2}
v_lshl_add_u32 v{T+1}, v{T+1}, 10, v{T+2}
s_lshl_b32 s70, s31, 7
s_lshl_b32 s71, s27, 13
s_add_u32 s70, s70, s71
s_waitcnt vmcnt(0) lgkmcnt(0)
s_barrier
""")
    for n in range(3):
        a(f"""s_add_u32 s64, s69, {n}
s_and_b32 s64, s64, 3
s_lshl_b32 s64, s64, 17
s_add_u32 m0, s63, {WO_SLOTS[n]:#x}
s_add_u32 s64, s64, s70
buffer_load_dwordx4 v{T+1}, s[36:39], s64 offen lds
s_add_u32 m0, s63, {WO_SLOTS[n]+0x2000:#x}
s_add_u32 s64, s64, 0x10000
buffer_load_dwordx4 v{T+1}, s[36:39], s64 offen lds""")
    a(f"""
s_cmp_lg_u32 s27, {FW}
s_cbranch_scc1 P2_LOOP
s_cmp_gt_u32 s29, 27
s_cbranch_scc1 P2_LOOP
""")
    A = T+4; R = T+8; D = T+40; H = T+44; YA = T+56
    a(f"""
v_lshrrev_b32 v{A}, 4, v2
v_lshlrev_b32 v{A+1}, 4, v{A}
v_add_u32 v{A+1}, {L_XS:#x}, v{A+1}
v_bfe_u32 v{A+2}, v2, 2, 2
v_lshl_add_u32 v{A}, v{A}, 3, v{A+2}
v_lshlrev_b32 v{A}, 4, v{A}
v_bfe_u32 v{A+3}, v2, 1, 1
v_lshl_add_u32 v{A}, v{A+3}, 13, v{A}
v_and_b32 v{A+3}, 1, v2
v_lshl_add_u32 v{A}, v{A+3}, 3, v{A}
v_add_u32 v{A}, {L_FG:#x}, v{A}
v_bfe_u32 v{A+3}, v2, 4, 1
v_lshl_add_u32 v{A+2}, v{A+3}, 2, v{A+2}
v_lshlrev_b32 v{A+2}, 10, v{A+2}
v_and_b32 v{A+3}, 3, v2
v_lshl_add_u32 v{A+2}, v{A+3}, 3, v{A+2}
v_add_u32 v{A+2}, {L_FD:#x}, v{A+2}
""")
    for blk in range(4):
        for s in range(4):
            ks = blk*4+s; b = R + 8*s
            a(f"ds_read_b64_tr_b16 {vr(b,2)}, v{A} offset:{ks*512}")
            a(f"ds_read_b64_tr_b16 {vr(b+2,2)}, v{A} offset:{ks*512+64}")
            a(f"ds_read_b128 {vr(b+4,4)}, v{A+1} offset:{ks*64}")
        for s in range(4):
            ks = blk*4+s; b = R + 8*s
            a(f"s_waitcnt lgkmcnt({9-3*s})")
            a(f"v_mfma_f32_16x16x32_bf16 {vr(D,4)}, {vr(b,4)}, {vr(b+4,4)}, {vr(D,4) if ks else 0}")
    for q in range(16): a(f"ds_read_b64_tr_b16 {vr(R+2*q,2)}, v{A+2} offset:{q*32}")
    for r in range(4): a(f"v_mov_b32 v{H+r}, v{D+r}")
    a("s_nop 1")
    for r in range(4): a(f"v_permlane32_swap_b32 v{H+r}, v{D+r}")
    a("s_nop 1")
    for r in range(4): a(f"v_mul_f32 v{H+4+r}, {f32bits(-LOG2E):#x}, v{H+r}")
    for r in range(4): a(f"v_exp_f32 v{H+4+r}, v{H+4+r}")
    for r in range(4): a(f"v_mul_f32 v{H+r}, v{H+r}, v{D+r}")
    for r in range(4): a(f"v_add_f32 v{H+4+r}, 1.0, v{H+4+r}")
    for r in range(4): a(f"v_rcp_f32 v{H+4+r}, v{H+4+r}")
    a("s_nop 0")
    for r in range(4): a(f"v_mul_f32 v{H+r}, v{H+r}, v{H+4+r}")
    a(f"v_cvt_pk_bf16_f32 v{D}, v{H}, v{H+1}\nv_cvt_pk_bf16_f32 v{D+1}, v{H+2}, v{H+3}")
    for j in range(4): a(f"v_mov_b64 {vr(H+2*j,2)}, 0")
    a("s_mov_b32 exec_hi, 0")
    for j in range(4):
        a(f"s_mov_b32 exec_lo, {(0xf << (4*j)) * 0x10001:#x}\nv_mov_b64 {vr(H+2*j,2)}, {vr(D,2)}")
    a("s_mov_b64 exec, -1\ns_nop 1")
    for half in range(2):
        if half:
            for q in range(16): a(f"ds_read_b64_tr_b16 {vr(R+2*q,2)}, v{A+2} offset:{512+q*32}")
        a("s_waitcnt lgkmcnt(0)")
        for j in range(4):
            for Qn in range(4):
                acc = vr(YA + 4*(half*4+Qn), 4)
                a(f"v_mfma_f32_16x16x16_bf16 {acc}, {vr(H+2*j,2)}, {vr(R+2*(Qn*4+j),2)}, {acc if j else 0}")
    a(f"v_lshlrev_b32 v{A}, 2, v2\ns_mov_b32 s64, {WS_Y:#x}\ns_nop 7")
    for Qn in range(8):
        a(f"buffer_atomic_add_f32 v{YA+4*Qn}, v{A}, s[32:35], s64 offen offset:{Qn*256}")
    a("s_branch P2_LOOP")
    a(f"""
P2_FIN:
s_nop 1
{smf(O1, FB+8, S1+8)}
""")
    stampc(a, 7)
    stamp(a, 8)
    a(f"""
s_lshl_b32 s64, s27, 11
s_xor_b32 s65, s64, 0x2000
v_add_u32 v14, s64, v3
v_add_u32 v15, s65, v3
s_lshr_b32 s64, s64, 3
s_lshr_b32 s65, s65, 3
v_lshlrev_b32 v{T+2}, 2, v2
v_add_u32 v{T+3}, s65, v{T+2}
v_add_u32 v{T+2}, s64, v{T+2}
v_add_u32 v14, {L_OX:#x}, v14
v_add_u32 v15, {L_OX:#x}, v15
v_add_u32 v{T+2}, {L_LS:#x}, v{T+2}
v_add_u32 v{T+3}, {L_LS:#x}, v{T+3}
s_cmp_eq_u32 s50, 0
s_cbranch_scc1 P2_X0
ds_write_b128 v14, {vr(O0,4)}
ds_write_b128 v14, {vr(O0+4,4)} offset:1024
ds_write_b32 v{T+2}, v{O0+8}
""")
    for i in range(5): a(f"v_mov_b64 {vr(O0+2*i,2)}, {vr(O1+2*i,2)}")
    for i in range(2): a(f"v_mov_b64 {vr(Q0+2*i,2)}, {vr(Q1+2*i,2)}")
    a(f"""
s_branch P2_X1
P2_X0:
ds_write_b128 v14, {vr(O1,4)}
ds_write_b128 v14, {vr(O1+4,4)} offset:1024
ds_write_b32 v{T+2}, v{O1+8}
P2_X1:
s_add_u32 s51, s51, s50
s_lshl_b32 s52, s51, 5
s_add_u32 s52, s52, s48
s_lshl_b32 s53, s52, 10
s_add_u32 s53, s53, {WS_OF:#x}
s_lshl_b32 s52, s52, 2
s_add_u32 s52, s52, {WS_F2:#x}
s_waitcnt lgkmcnt(0)
s_barrier
ds_read_b128 {vr(S0,4)}, v15
ds_read_b128 {vr(S0+4,4)}, v15 offset:1024
ds_read_b32 v{S0+8}, v{T+3}
s_mov_b32 s68, 0
s_waitcnt lgkmcnt(0)
v_add_f32 v{O0+8}, v{O0+8}, v{S0+8}
""")
    for i in range(4): a(f"v_pk_add_f32 {vr(O0+2*i,2)}, {vr(O0+2*i,2)}, {vr(S0+2*i,2)}")
    a(f"""
P2_NORM:
v_rcp_f32 v{T+2}, v{O0+8}
v_cmp_ngt_f32 vcc, {f32bits(2.0**40):#x}, v{O0+8}
""")
    for i in range(8): a(f"v_mul_f32 v{O0+i}, v{O0+i}, v{T+2}")
    a(f"""
v_add_f32 v{T+3}, |v{O0}|, |v{O0+1}|
v_add_f32 v{T+4}, |v{O0+2}|, |v{O0+3}|
v_add_f32 v{T+5}, |v{O0+4}|, |v{O0+5}|
v_add_f32 v{T+6}, |v{O0+6}|, |v{O0+7}|
v_add3_f32_PLACEHOLDER
""".replace("v_add3_f32_PLACEHOLDER", f"v_add_f32 v{T+3}, v{T+3}, v{T+4}\nv_add_f32 v{T+5}, v{T+5}, v{T+6}\nv_add_f32 v{T+3}, v{T+3}, v{T+5}"))
    a(f"s_mov_b64 s[64:65], vcc\nv_cmp_ngt_f32 vcc, 0x7f800000, v{T+3}")
    for i in range(4): a(f"v_cvt_pk_bf16_f32 v{S0+i}, v{O0+2*i}, v{O0+2*i+1}")
    a(f"""
s_or_b64 vcc, vcc, s[64:65]
s_cmp_lg_u32 s68, 0
s_cbranch_scc1 P2_STORE
s_cbranch_vccnz P2_FALLBACK
P2_STORE:
buffer_store_dwordx4 {vr(S0,4)}, v3, s[32:35], s53 offen sc1
v_mov_b32 v{T+2}, s26
v_mov_b32 v{T+3}, 0
s_lshl_b32 s64, s2, 2
s_add_u32 s64, s64, {WS_F3:#x}
s_cmp_lt_u32 s27, 4
s_cbranch_scc1 P3_COMPUTE
s_waitcnt vmcnt(0)
s_mov_b64 exec, 1
buffer_store_dword v{T+2}, v{T+3}, s[32:35], s52 offen sc1
s_mov_b64 exec, -1
""")
    stamp(a, 9)
    a(f"""
s_add_u32 s64, s69, 3
s_and_b32 s64, s64, 3
s_lshl_b32 s64, s64, 17
s_lshl_b32 s65, s31, 7
s_add_u32 s64, s64, s65
s_lshl_b32 s65, s49, 15
s_add_u32 s64, s64, s65
s_lshl_b32 s65, s49, 12
s_add_u32 m0, s65, {WO_SLOTS[3]:#x}
s_and_b32 s70, s49, 1
""")
    for i in range(4):
        a(f"buffer_load_dwordx4 v{T+1}, s[36:39], s64 offen offset:{i*1024} lds")
        if i < 3: a("s_add_u32 s64, s64, 7168")
    a(f"""
s_lshl_b32 s71, s48, 1
s_add_u32 s71, s71, s70
s_lshl_b32 s72, s71, 7
s_add_u32 s72, s72, {WS_F2:#x}
v_and_b32 v4, 31, v2
v_lshlrev_b32 v4, 2, v4
s_mov_b32 s68, {POLL_MAX}
P3_POLL:
s_sleep {SL2}
buffer_load_dword v5, v4, s[32:35], s72 offen sc1
s_sub_u32 s68, s68, 1
s_cbranch_scc1 P3_POLLED
s_waitcnt vmcnt(0)
v_cmp_ne_u32 vcc, s26, v5
s_cbranch_vccnz P3_POLL
P3_POLLED:
""")
    stamp(a, 10)
    a(f"""
s_lshl_b32 s71, s71, 15
s_lshr_b32 s72, s49, 1
s_lshl_b32 s72, s72, 12
s_add_u32 s71, s71, s72
s_add_u32 s71, s71, {WS_OF:#x}
s_lshl_b32 s70, s70, 13
s_add_u32 s70, s70, s72
""")
    for n in range(4):
        a(f"""s_add_u32 s64, s69, {n}
s_and_b32 s64, s64, 3
s_lshl_b32 s64, s64, 13
s_add_u32 m0, s70, {OF_SLOTS[n]:#x}
s_add_u32 s64, s64, s71""")
        for i in range(4): a(f"buffer_load_dwordx4 v3, s[32:35], s64 offen offset:{i*1024} sc1 lds")
    for n in range(4): a(f"s_waitcnt vmcnt({12-4*n})\ns_barrier")
    endpgm(a)
    ACC = 64; X = 80; Y = 88; FR = 16; T3 = 104
    tbl_wo = sum((WO_SLOTS[n] >> 14) << (4*n) for n in range(4))
    tbl_of = sum((OF_SLOTS[n] >> 14) << (4*n) for n in range(4))
    a(f"""
P3_COMPUTE:
s_and_b32 s70, s27, 1
s_lshr_b32 s71, s27, 1
v_lshrrev_b32 v4, 5, v2
v_and_b32 v5, 31, v2
s_lshl_b32 s72, s48, 6
s_lshl_b32 s73, s70, 5
s_add_u32 s72, s72, s73
v_add_u32 v12, s72, v5
s_lshl_b32 s73, s31, 6
s_lshl_b32 s74, s71, 5
s_add_u32 s73, s73, s74
v_lshl_add_u32 v13, v4, 4, s73
v_lshlrev_b32 v14, 10, v12
v_lshl_add_u32 v14, v13, 1, v14
v_lshlrev_b32 v15, 2, v12
v_lshlrev_b32 v13, 2, v13
v_mov_b32 v6, {L_MISC:#x}
ds_read_b32 v{T3}, v6
""")
    srd(a, 40, 4, 0x200000)
    srd(a, 44, 22, 0x200000)
    a(f"""
s_mov_b32 s74, {WS_G:#x}
s_waitcnt vmcnt(0)
s_mov_b64 exec, 1
buffer_store_dword v{T+2}, v{T+3}, s[32:35], s52 offen sc1
s_cmp_lg_u32 s27, {FW}
s_cbranch_scc1 P3_NOF3
buffer_store_dword v{T+2}, v{T+3}, s[32:35], s64 offen sc1
P3_NOF3:
s_mov_b64 exec, -1
""")
    stamp(a, 9)
    a(f"""
buffer_load_dword v{T3+1}, v15, s[32:35], s74 offen sc1
buffer_load_dwordx4 {vr(X,4)}, v14, s[40:43], 0 offen
buffer_load_dwordx4 {vr(X+4,4)}, v14, s[40:43], 0 offen offset:16
s_lshl_b32 s72, s70, 13
v_add_u32 v10, s72, v3
v_bfe_u32 v6, v2, 2, 2
v_lshl_add_u32 v7, v4, 2, v6
v_lshlrev_b32 v7, 7, v7
v_lshrrev_b32 v6, 1, v6
v_xor_b32 v6, s71, v6
v_lshl_add_u32 v7, v6, 6, v7
v_and_b32 v6, 1, v2
v_lshl_add_u32 v7, v6, 5, v7
v_bfe_u32 v6, v2, 4, 1
v_lshl_add_u32 v7, v6, 4, v7
v_bfe_u32 v6, v2, 1, 1
v_lshl_add_u32 v11, v6, 3, v7
""")
    for i in range(8): a(f"v_mov_b64 {vr(ACC+2*i,2)}, 0")
    a(f"""
s_waitcnt lgkmcnt(0)
v_and_b32 v{T3+2}, 0x7ff, v{T3}
v_sub_u32 v{T3+2}, 0x7ff, v{T3+2}
v_cmp_eq_u32 s[76:77], v{T3+2}, v12
v_and_b32 v{T3}, 0xffff0000, v{T3}
v_ashrrev_i32 v{T3+3}, 31, v{T3}
v_not_b32 v{T3+3}, v{T3+3}
v_or_b32 v{T3+3}, 0x80000000, v{T3+3}
v_xor_b32 v{T3}, v{T3}, v{T3+3}
v_and_b32 v{T3}, 0xffff0000, v{T3}
v_mul_f32 v{T3}, {f32bits(-LOG2E):#x}, v{T3}
v_exp_f32 v{T3}, v{T3}
s_waitcnt vmcnt(0)
v_sub_f32 v{T3+4}, 1.0, v{T3+1}
v_add_f32 v{T3}, 1.0, v{T3}
v_rcp_f32 v{T3}, v{T3}
""")
    B = 48
    for i in range(8):
        a(f"v_lshlrev_b32 v{B+2*i}, 16, v{X+i}\nv_and_b32 v{B+2*i+1}, 0xffff0000, v{X+i}")
    a(f"""
s_cmp_eq_u64 s[76:77], 0
s_cbranch_scc1 P3_NOSEL
s_mov_b32 s74, {WS_F3:#x}
s_mov_b32 s68, {POLL_MAX}
P3_POLL3:
s_sleep {SL2}
buffer_load_dwordx4 {vr(Y,4)}, v3, s[32:35], s74 offen sc1
s_sub_u32 s68, s68, 1
s_cbranch_scc1 P3_POLLED3
s_waitcnt vmcnt(0)
v_cmp_ne_u32 vcc, s26, v{Y}
v_cmp_ne_u32 s[64:65], s26, v{Y+1}
s_or_b64 vcc, vcc, s[64:65]
v_cmp_ne_u32 s[64:65], s26, v{Y+2}
s_or_b64 vcc, vcc, s[64:65]
v_cmp_ne_u32 s[64:65], s26, v{Y+3}
s_or_b64 vcc, vcc, s[64:65]
s_cbranch_vccnz P3_POLL3
P3_POLLED3:
s_mov_b32 s74, {WS_Y:#x}
s_mov_b64 exec, s[76:77]
""")
    for i in range(4): a(f"buffer_load_dwordx4 {vr(Y+4*i,4)}, v13, s[32:35], s74 offen offset:{16*i} sc1")
    a("s_waitcnt vmcnt(0)")
    for i in range(16): a(f"v_fmac_f32 v{B+i}, v{Y+i}, v{T3}")
    a("s_mov_b64 exec, -1\nP3_NOSEL:")
    for i in range(16): a(f"v_mul_f32 v{B+i}, v{B+i}, v{T3+4}")
    a(f"""
s_mov_b32 s72, {tbl_wo:#x}
s_mov_b32 s73, {tbl_of:#x}
P3_LOOP:
s_and_b32 s74, s72, 15
s_lshl_b32 s74, s74, 14
s_and_b32 s75, s73, 15
s_lshl_b32 s75, s75, 14
v_add_u32 v8, s75, v10
v_add_u32 v9, s74, v11
s_lshr_b32 s72, s72, 4
s_barrier
""")
    def reads3(hh):
        b = FR + 8*(hh % 4)
        a(f"ds_read_b128 {vr(b,4)}, v8 offset:{hh*1024}")
        a(f"ds_read_b64_tr_b16 {vr(b+4,2)}, v9 offset:{hh*2048}")
        a(f"ds_read_b64_tr_b16 {vr(b+6,2)}, v9 offset:{hh*2048+1024}")
    for hh in range(4): reads3(hh)
    for hh in range(8):
        b = FR + 8*(hh % 4)
        a(f"s_waitcnt lgkmcnt({3*min(3, 7-hh)})")
        a(f"v_mfma_f32_32x32x16_bf16 {vr(ACC,16)}, {vr(b+4,4)}, {vr(b,4)}, {vr(ACC,16)}")
        if hh + 4 < 8: reads3(hh+4)
    a(f"""
s_lshr_b32 s73, s73, 4
s_cbranch_scc1 P3_LOOP
s_nop 10
""")
    stamp(a, 10)
    for i in range(16): a(f"v_fmac_f32 v{B+i}, v{ACC+i}, v{T3+1}")
    for i in range(8): a(f"v_cvt_pk_bf16_f32 v{X+i}, v{B+2*i}, v{B+2*i+1}")
    a(f"""
buffer_store_dwordx4 {vr(X,4)}, v14, s[44:47], 0 offen
buffer_store_dwordx4 {vr(X+4,4)}, v14, s[44:47], 0 offen offset:16
s_or_b32 s64, s2, s27
s_cbranch_scc1 L_END
s_mov_b32 s64, {WS_E:#x}
s_mov_b64 exec, 1
buffer_store_dword v{T+2}, v{T+3}, s[32:35], s64 offen sc1
L_END:
""")
    endpgm(a)
    a("L_EXIT:\ns_endpgm")
    a(f"""
P2_FALLBACK:
s_mov_b32 s68, 1
s_mov_b32 s64, s54
s_add_u32 s65, s54, 0x20000
v_mov_b32 v{T+2}, 0xff800000
FB_MAX:
buffer_load_dwordx4 {vr(FA,4)}, v3, s[32:35], s64 offen sc1
s_add_u32 s64, s64, 2048
s_waitcnt vmcnt(0)
v_mfma_f32_32x32x16_bf16 {vr(S0,16)}, {vr(FA,4)}, {vr(Q0,4)}, 0
s_nop 15
""")
    for i in range(8): a(f"v_max3_f32 v{T+2}, v{T+2}, v{S0+2*i}, v{S0+2*i+1}")
    a(f"""
s_cmp_lt_u32 s64, s65
s_cbranch_scc1 FB_MAX
v_mov_b32 v{T+3}, v{T+2}
s_nop 1
v_permlane32_swap_b32 v{T+3}, v{T+2}
s_nop 1
v_max_f32 v{T+2}, v{T+2}, v{T+3}
""")
    for i in range(16): a(f"v_mul_f32 v{M0+i}, -1.0, v{T+2}")
    for i in range(8): a(f"v_mov_b64 {vr(O0+2*i,2)}, 0")
    a(f"""
s_mov_b32 s64, s54
FB_ACC:
buffer_load_dwordx4 {vr(FA,4)}, v3, s[32:35], s64 offen sc1
s_mov_b64 exec, s[58:59]
buffer_load_dwordx4 {vr(FA+4,4)}, v3, s[32:35], s64 offen offset:1024 sc1
buffer_load_dwordx4 {vr(FA+8,4)}, v3, s[32:35], s64 offen offset:1280 sc1
s_mov_b64 exec, -1
s_add_u32 s64, s64, 2048
s_waitcnt vmcnt(0)
{qk(S0, FA, Q0, M0)}
s_nop 15
""")
    for i in range(16): a(f"v_exp_f32 v{S0+i}, v{S0+i}")
    a(f"""
s_nop 1
{smf(O0, FA+4, S0)}
{smf(O0, FA+8, S0+8)}
s_cmp_lt_u32 s64, s65
s_cbranch_scc1 FB_ACC
s_nop 15
s_branch P2_NORM
""")
    return name

def main():
    body = Asm()
    name = gen(body)
    vg, sg = (256, 100) if STAMP else (232, 80)
    out = f"""; generated by gen/gen2.py (own generator script)
; @launch grid=(256,1,1) block=(512,1,1) lds={LDS_BYTES}
.amdgcn_target "amdgcn-amd-amdhsa--gfx950"
.text
""" + body.text() + f""".section .rodata,"a"
.p2align 6
.amdhsa_kernel {name}
  .amdhsa_next_free_vgpr {vg}
  .amdhsa_next_free_sgpr {sg}
  .amdhsa_accum_offset {vg}
  .amdhsa_group_segment_fixed_size 0
  .amdhsa_kernarg_size 96
  .amdhsa_user_sgpr_count 2
  .amdhsa_user_sgpr_kernarg_segment_ptr 1
  .amdhsa_system_sgpr_workgroup_id_x 1
.end_amdhsa_kernel
"""
    if EXP & 1:
        out = out.replace("v[136:139], v22,", "v[136:139], v3,").replace("v[140:143], v22,", "v[140:143], v3,")
        out = out.replace("v[144:147], v23, s[32:35], s59 offen offset:1024", "v[144:147], v3, s[32:35], s59 offen offset:1024").replace("v[148:151], v23, s[32:35], s59 offen offset:1280", "v[148:151], v3, s[32:35], s60 offen offset:1024")
    if EXP & 2:
        for r in ("v[136:139]", "v[140:143]", "v[144:147]", "v[148:151]", "v[128:131]", "v[132:135]"):
            out = "\n".join((l.replace(" sc1", "") if ("buffer_store_dwordx4 " + r) in l else l) for l in out.split("\n"))
    if EXP & 4:
        out = "\n".join(l for l in out.split("\n") if not ("buffer_store_dwordx4 v[128:131]" in l or "buffer_store_dwordx4 v[132:135]" in l))
    path = sys.argv[1] if len(sys.argv) > 1 else f"cdna_kernels/{NAME}.s"
    open(path, "w").write(out)
main()
```

```python
import math, struct, sys, os

NAME = "gated_mix__mha_block__moe_arch_mod__prompt"
STAMP = bool(os.environ.get("STAMP"))
EXP = int(os.environ.get("EXP", "0"))

WS_QF = 0x000000
WS_KV = 0x200000
WS_OF = 0x600000
WS_G  = 0x800000
WS_Y  = 0x803000
WS_F1 = 0x810000
WS_F2 = 0x812000
WS_F3 = 0x815000
WS_KG = 0x816000
WS_E  = 0x818000
WS_SIZE = 0x10000000
POLL_MAX = 1 << 18

L_FG = 0x20000; L_FU = 0x22000; L_FD = 0x24000; L_XS = 0x26000
L_LS = 0x26800
L_MISC = 0x27000
L_OX = 0x14000
WO_SLOTS = [0x0000, 0x4000, 0x10000, 0x8000]
OF_SLOTS = [0xC000, 0x18000, 0x1C000, 0x20000]
LDS_BYTES = 0x28000

def f32bits(x): return struct.unpack("<I", struct.pack("<f", x))[0]
LOG2E = 1.4426950408889634
QSCALE = 0.25 * LOG2E

class Asm:
    def __init__(self): self.l = []
    def __call__(self, s):
        for line in s.strip("\n").split("\n"):
            line = line.strip()
            if not line: continue
            if line.endswith(":") : self.l.append(line)
            else: self.l.append("    " + line)
    def text(self): return "\n".join(self.l) + "\n"

def vr(a, n): return f"v[{a}:{a+n-1}]"
def srd(a, d, lo, nbytes):
    a(f"s_mov_b32 s{d}, s{lo}\ns_mov_b32 s{d+1}, s{lo+1}\ns_mov_b32 s{d+2}, {nbytes:#x}\ns_mov_b32 s{d+3}, 0x00020000")

NST = 14
DBGST = int(os.environ.get('DBGST', '0'))
SL1 = int(os.environ.get('SL1', '4')); SL2 = int(os.environ.get('SL2', '4'))
PQ = int(os.environ.get('PQ', '5')); PS = int(os.environ.get('PS', '11'))
def stamp(a, slot):
    if not STAMP: return
    a(f"s_memrealtime s[82:83]\ns_waitcnt lgkmcnt(0)\ns_mov_b32 s{86+slot}, s82")
def stampc(a, slot):
    if not STAMP: return
    a(f"s_memtime s[82:83]\ns_waitcnt lgkmcnt(0)\ns_sub_u32 s{86+slot}, s82, s{86+slot}")
def endpgm(a):
    if STAMP:
        a(f"""s_waitcnt vmcnt(0)
s_memrealtime s[82:83]
s_waitcnt lgkmcnt(0)
s_mov_b64 exec, 1
s_lshl_b32 s79, s2, 3
s_add_u32 s79, s79, s27
s_lshl_b32 s79, s79, 6
s_add_u32 s79, s79, 0x1000000
v_mov_b32 v249, s79
v_mov_b32 v232, s80
v_mov_b32 v233, s82""")
        for i in range(NST): a(f"v_mov_b32 v{234+i}, s{86+i}")
        for i in range(4): a(f"global_store_dwordx4 v249, {vr(232+4*i,4)}, s[24:25] offset:{16*i}")
        if DBGST:
            lab = f"L_DB{len(a.l)}"
            a(f"s_cmp_lg_u32 s2, {DBGST-1}\ns_cbranch_scc1 {lab}\ns_cmp_lg_u32 s27, 0\ns_cbranch_scc1 {lab}")
            a("s_load_dwordx2 s[4:5], s[0:1], 80\nv_mov_b32 v249, 0")
            for i in range(1, 16):
                if i != 9: a(f"v_sub_u32 v{232+i}, v{232+i}, v232")
            a("s_waitcnt lgkmcnt(0)")
            for i in range(4): a(f"global_store_dwordx4 v249, {vr(232+4*i,4)}, s[4:5] offset:{16*i}")
            a(f"{lab}:")
    a("s_endpgm")

def umax_reduce64(a, v, t):
    for pat in ("quad_perm:[1,0,3,2]", "quad_perm:[2,3,0,1]", "row_half_mirror", "row_mirror"):
        a(f"s_nop 1\nv_max_u32_dpp v{v}, v{v}, v{v} {pat} row_mask:0xf bank_mask:0xf")
    for sw in ("v_permlane16_swap_b32", "v_permlane32_swap_b32"):
        a(f"v_mov_b32 v{t}, v{v}\ns_nop 1\n{sw} v{t}, v{v}\ns_nop 1\nv_max_u32 v{v}, v{v}, v{t}")

def gen(a):
    name = NAME + "_kernel"
    a.l.append(f".globl {name}\n.p2align 8\n.type {name},@function\n{name}:")
    if STAMP:
        a("s_memrealtime s[80:81]")
        for i in range(NST): a(f"s_mov_b32 s{86+i}, 0")
    a("""
s_cmp_ge_u32 s2, 256
s_cbranch_scc1 L_EXIT
s_load_dwordx4 s[4:7], s[0:1], 0
s_load_dwordx2 s[24:25], s[0:1], 88
s_load_dwordx2 s[8:9], s[0:1], 16
s_load_dwordx8 s[12:19], s[0:1], 32
s_load_dwordx4 s[20:23], s[0:1], 64
v_lshrrev_b32 v1, 6, v0
v_and_b32 v2, 63, v0
s_and_b32 s28, s2, 7
v_readfirstlane_b32 s27, v1
s_lshr_b32 s29, s2, 3
s_lshr_b32 s48, s28, 1
s_lshl_b32 s48, s48, 3
s_lshr_b32 s31, s29, 2
s_add_u32 s48, s48, s31
s_and_b32 s30, s29, 3
s_and_b32 s49, s28, 1
s_lshl_b32 s49, s49, 2
s_add_u32 s49, s49, s30
s_lshl_b32 s50, s30, 1
s_add_u32 s50, s50, s31
s_and_b32 s50, s50, 7
v_lshlrev_b32 v3, 4, v2
s_cmp_lt_u32 s27, 4
s_cbranch_scc1 P1_COMPUTE
""")
    a("""
s_sub_u32 s51, s27, 4
s_lshl_b32 s57, s48, 16
s_sub_u32 s58, s51, 1
s_lshl_b32 s58, s58, 10
s_lshl_b32 s59, s49, 7
s_add_u32 s58, s58, s59
s_cmp_eq_u32 s51, 0
s_movk_i32 s52, 3072
s_cmovk_i32 s52, 1024
s_cselect_b32 s53, 3, 0
s_cselect_b32 s54, 0, 4
s_cselect_b32 s55, 64, 0
s_mov_b32 s56, 0x30000
s_cmovk_i32 s56, 128
s_mov_b32 s38, 0x180000
s_cmov_b32 s38, 0x200000
s_cselect_b32 s57, s57, s58
s_mov_b32 s39, 0x00020000
v_lshrrev_b32 v4, 3, v2
v_and_b32 v5, 7, v2
v_lshrrev_b32 v6, 1, v4
v_and_b32 v6, s53, v6
v_lshlrev_b32 v7, 1, v4
v_and_b32 v7, s54, v7
v_xor_b32 v5, v5, v6
v_xor_b32 v5, v5, v7
v_lshlrev_b32 v5, 4, v5
v_mul_lo_u32 v4, v4, s52
v_add3_u32 v8, v4, v5, s57
v_xor_b32 v9, s55, v8
s_lshl_b32 s60, s52, 3
s_sub_u32 s60, s60, 1024
s_lshl_b32 s61, s51, 13
s_mov_b32 s62, 0
s_cmp_eq_u32 s51, 0
s_waitcnt lgkmcnt(0)
s_cselect_b32 s36, s4, s6
s_cselect_b32 s37, s5, s7
P1_LD_LOOP:
s_cmp_lt_u32 s62, 3
s_cbranch_scc1 P1_LD_ISSUE
s_waitcnt vmcnt(16)
s_barrier
P1_LD_ISSUE:
s_add_u32 s63, s62, s50
s_and_b32 s63, s63, 7
s_and_b32 s64, s62, 3
s_lshl_b32 s64, s64, 15
s_add_u32 m0, s64, s61
s_mul_i32 s63, s63, s56
""")
    for i in range(8):
        if i == 4: a("s_add_u32 m0, m0, 4096\ns_add_u32 s63, s63, 4096")
        a(f"buffer_load_dwordx4 v{8+(i&1)}, s[36:39], s63 offen offset:{(i%4)*1024} lds")
        if i != 7: a("s_add_u32 s63, s63, s60")
    a(f"""
s_add_u32 s62, s62, 1
s_cmp_lt_u32 s62, 8
s_cbranch_scc1 P1_LD_LOOP
s_mov_b32 s65, {WS_E:#x}
s_load_dword s26, s[24:25], s65
""")
    srd(a, 32, 24, WS_SIZE)
    a("""
s_waitcnt vmcnt(16)
s_barrier
s_waitcnt vmcnt(8)
s_barrier
s_waitcnt vmcnt(0) lgkmcnt(0)
s_barrier
s_mul_i32 s26, s26, 0x9e3779b1
s_add_u32 s26, s26, 0x7f4a7c15
s_cmp_lg_u32 s51, 1
s_cbranch_scc1 P1_DONE
""")
    X = 16; WR = 48; WGT = 52; P = 56
    a("P1_RG:")
    srd(a, 36, 4, 0x200000)
    srd(a, 40, 12, 1024)
    srd(a, 44, 20, 1024)
    a("""
s_lshl_b32 s52, s48, 3
s_add_u32 s52, s52, s49
s_lshl_b32 s53, s52, 13
s_add_u32 s54, s53, 4096
""")
    a(f"buffer_load_dwordx4 {vr(WR,4)}, v3, s[40:43], 0 offen")
    a(f"buffer_load_dwordx4 {vr(WGT,4)}, v3, s[44:47], 0 offen")
    for i in range(8):
        a(f"buffer_load_dwordx4 {vr(X+4*i,4)}, v3, s[36:39], s{53 if i < 4 else 54} offen offset:{(i%4)*1024}")
    for i in range(8): a(f"v_mov_b64 {vr(P+2*i,2)}, 0")
    a(f"""
s_cmp_lg_u32 s2, 0
s_cbranch_scc1 P1_RG_NOZ
s_mov_b32 s55, {WS_Y:#x}
buffer_store_dwordx4 {vr(P,4)}, v3, s[32:35], s55 offen sc1
buffer_store_dwordx4 {vr(P,4)}, v3, s[32:35], s55 offen offset:1024 sc1
P1_RG_NOZ:
s_waitcnt vmcnt(0)
""")
    for k in range(4):
        for i in range(8):
            a(f"v_dot2c_f32_bf16 v{P+i}, v{X+4*i+k}, v{WR+k}")
            a(f"v_dot2c_f32_bf16 v{P+8+i}, v{X+4*i+k}, v{WGT+k}")
    a("s_nop 2")
    for i in range(8): a(f"v_permlane32_swap_b32 v{P+i}, v{P+8+i}")
    a("s_nop 1")
    for i in range(8): a(f"v_add_f32 v{P+i}, v{P+i}, v{P+8+i}")
    a("s_nop 1")
    for i in range(4): a(f"v_permlane16_swap_b32 v{P+i}, v{P+4+i}")
    a("s_nop 1")
    for i in range(4): a(f"v_add_f32 v{P+i}, v{P+i}, v{P+4+i}")
    for pat in ("row_ror:8", "row_ror:4", "row_ror:2", "row_ror:1"):
        a("s_nop 1")
        for i in range(4): a(f"v_add_f32_dpp v{P+i}, v{P+i}, v{P+i} {pat} row_mask:0xf bank_mask:0xf")
    a(f"""
v_and_b32 v4, 1, v2
v_cmp_eq_u32 vcc, 0, v4
v_and_b32 v4, 2, v2
v_cmp_eq_u32 s[56:57], 0, v4
v_cndmask_b32 v{P}, v{P+1}, v{P}, vcc
v_cndmask_b32 v{P+2}, v{P+3}, v{P+2}, vcc
v_cndmask_b32 v{P}, v{P+2}, v{P}, s[56:57]
v_cvt_pk_bf16_f32 v{P}, v{P}, v{P}
v_and_b32 v{P}, 0xffff0000, v{P}
v_mul_f32 v5, {f32bits(-LOG2E):#x}, v{P}
v_exp_f32 v5, v5
v_ashrrev_i32 v6, 31, v{P}
v_or_b32 v6, 0x80000000, v6
v_add_f32 v5, 1.0, v5
v_rcp_f32 v5, v5
v_xor_b32 v6, v{P}, v6
v_and_b32 v6, 0xffff0000, v6
v_and_b32 v4, 3, v2
v_bfe_u32 v7, v2, 4, 1
v_lshl_add_u32 v4, v7, 2, v4
s_lshl_b32 s53, s52, 3
v_add_u32 v4, s53, v4
v_sub_u32 v7, 0x7ff, v4
v_or_b32 v6, v6, v7
v_cvt_pk_bf16_f32 v5, v5, v5
v_and_b32 v5, 0xffff0000, v5
v_lshlrev_b32 v4, 2, v4
s_mov_b32 s53, {WS_G:#x}
s_mov_b32 exec_lo, 0
buffer_store_dword v5, v4, s[32:35], s53 offen sc1
v_mov_b32 v6, 0
s_mov_b32 exec_lo, -1
""")
    umax_reduce64(a, 6, 7)
    a(f"""
v_mov_b32 v7, s26
s_lshl_b32 s53, s52, 3
s_add_u32 s53, s53, {WS_KG:#x}
v_mov_b32 v4, 0
s_waitcnt vmcnt(0)
s_mov_b64 exec, 1
buffer_store_dwordx2 v[6:7], v4, s[32:35], s53 offen sc1
s_mov_b64 exec, -1
s_branch P1_DONE
""")
    AQ, AK, AV, FR = 64, 80, 96, 128
    a(f"""
P1_COMPUTE:
s_and_b32 s51, s27, 1
s_lshr_b32 s52, s27, 1
v_lshrrev_b32 v4, 5, v2
v_and_b32 v5, 31, v2
v_bfe_u32 v6, v2, 1, 3
v_xor_b32 v6, v6, v4
v_lshlrev_b32 v6, 4, v6
s_lshl_b32 s53, s51, 12
v_lshl_add_u32 v6, v5, 7, v6
v_add_u32 v10, s53, v6
v_xor_b32 v11, 32, v10
v_xor_b32 v12, 64, v10
v_xor_b32 v13, 0x60, v10
v_bfe_u32 v6, v2, 2, 2
v_lshl_add_u32 v7, v4, 3, v6
v_lshlrev_b32 v7, 7, v7
v_lshrrev_b32 v6, 1, v6
v_xor_b32 v6, s52, v6
v_lshl_add_u32 v7, v6, 6, v7
v_bfe_u32 v6, v2, 4, 1
v_lshl_add_u32 v7, v6, 5, v7
v_and_b32 v6, 3, v2
v_lshl_add_u32 v7, v6, 3, v7
v_add_u32 v14, 0x2000, v7
""")
    for i in range(24): a(f"v_mov_b64 {vr(AQ+2*i,2)}, 0")
    for i in range(16): a(f"v_mov_b64 {vr(FR+32+2*i,2)}, 0")
    a(f"""
s_mov_b32 s65, {WS_E:#x}
s_mov_b32 s62, 0
v_mov_b32 v21, 0
s_waitcnt lgkmcnt(0)
""")
    srd(a, 32, 24, WS_SIZE)
    a("buffer_load_dword v21, v21, s[32:35], s65 offen")
    stamp(a, 0)
    a("""
P1_LOOP:
s_and_b32 s64, s62, 3
s_lshl_b32 s64, s64, 15
v_add_u32 v16, s64, v10
v_add_u32 v20, s64, v14
v_add_u32 v17, s64, v11
v_add_u32 v18, s64, v12
v_add_u32 v19, s64, v13
s_barrier
""")
    if STAMP:
        a("s_cmp_lg_u32 s62, 0\ns_cbranch_scc1 P1_ST1"); stamp(a, 1); a("P1_ST1:")
    def reads(s):
        b = FR + 16*s
        r = [f"ds_read_b128 {vr(b,4)}, v{16+s}"]
        for sec in range(3):
            for jj in range(2):
                r.append(f"ds_read_b64_tr_b16 {vr(b+4+4*sec+2*jj,2)}, v20 offset:{sec*8192+s*2048+jj*512}")
        return r
    def mfmas(s):
        b = FR + 16*s
        X_ = vr(b,4); WQ = vr(b+4,4); WK = vr(b+8,4); WV = vr(b+12,4)
        return [f"v_mfma_f32_32x32x16_bf16 {vr(AK,16)}, {WK}, {X_}, {vr(AK,16)}",
                f"v_mfma_f32_32x32x16_bf16 {vr(AV,16)}, {X_}, {WV}, {vr(AV,16)}",
                f"v_mfma_f32_32x32x16_bf16 {vr(AQ,16)}, {WQ}, {X_}, {vr(AQ,16)}"]
    def inter(r, m):
        for i in range(3):
            a(m[i])
            for x in r[i*2:(i+1)*2 + (1 if i == 2 else 0)]: a(x)
    inter(reads(0), mfmas(2)); inter(reads(1), mfmas(3))
    a("s_waitcnt lgkmcnt(7)"); inter(reads(2), mfmas(0))
    a("s_waitcnt lgkmcnt(7)"); inter(reads(3), mfmas(1))
    a("""
s_add_u32 s62, s62, 1
s_cmp_lt_u32 s62, 8
s_waitcnt lgkmcnt(0)
s_cbranch_scc1 P1_LOOP
""")
    for x in mfmas(2) + mfmas(3): a(x)
    a(f"""
s_waitcnt vmcnt(0)
v_readfirstlane_b32 s26, v21
s_lshl_b32 s53, s48, 1
s_add_u32 s53, s53, s51
s_lshl_b32 s54, s49, 2
s_lshl_b32 s55, s52, 1
s_add_u32 s54, s54, s55
s_lshl_b32 s56, s53, 10
s_lshl_b32 s57, s54, 16
s_add_u32 s57, s57, s56
s_add_u32 s58, s57, 0x10000
s_lshl_b32 s59, s57, 1
s_add_u32 s59, s59, {WS_KV:#x}
s_add_u32 s60, s59, 0x20000
s_mov_b32 s64, {f32bits(QSCALE):#x}
s_mov_b32 s65, {f32bits(QSCALE):#x}
s_mul_i32 s26, s26, 0x9e3779b1
s_add_u32 s26, s26, 0x7f4a7c15
v_and_b32 v6, 0x33, v2
v_and_b32 v7, 4, v2
v_lshl_or_b32 v6, v7, 1, v6
v_and_b32 v7, 8, v2
v_lshrrev_b32 v7, 1, v7
v_or_b32 v6, v6, v7
v_lshlrev_b32 v22, 4, v6
v_and_b32 v6, 0x2f, v2
v_lshlrev_b32 v6, 4, v6
v_bfe_u32 v7, v2, 4, 1
v_lshl_add_u32 v23, v7, 17, v6
""")
    for i in range(8): a(f"v_cvt_pk_bf16_f32 v{136+i}, v{AK+2*i}, v{AK+1+2*i}")
    a(f"buffer_store_dwordx4 v[136:139], v22, s[32:35], s59 offen sc1")
    a(f"buffer_store_dwordx4 v[140:143], v22, s[32:35], s60 offen sc1")
    for i in range(8): a(f"v_cvt_pk_bf16_f32 v{144+i}, v{AV+2*i}, v{AV+1+2*i}")
    a(f"buffer_store_dwordx4 v[144:147], v23, s[32:35], s59 offen offset:1024 sc1")
    a(f"buffer_store_dwordx4 v[148:151], v23, s[32:35], s59 offen offset:1280 sc1")
    for i in range(8): a(f"v_pk_mul_f32 {vr(AQ+2*i,2)}, {vr(AQ+2*i,2)}, s[64:65]")
    for i in range(8): a(f"v_cvt_pk_bf16_f32 v{128+i}, v{AQ+2*i}, v{AQ+1+2*i}")
    a(f"buffer_store_dwordx4 v[128:131], v3, s[32:35], s57 offen sc1")
    a(f"buffer_store_dwordx4 v[132:135], v3, s[32:35], s58 offen sc1")
    stamp(a, 2)
    a(f"""
s_lshr_b32 s54, s54, 1
s_lshl_b32 s54, s54, 6
s_add_u32 s54, s54, s53
s_lshl_b32 s54, s54, 2
s_add_u32 s54, s54, {WS_F1:#x}
v_mov_b32 v6, s26
v_mov_b32 v7, 0
s_waitcnt vmcnt(0)
s_mov_b64 exec, 1
buffer_store_dword v6, v7, s[32:35], s54 offen sc1
s_mov_b64 exec, -1
""")
    stamp(a, 3)
    Q0, Q1, S0, S1, O0, O1, M0, M1, FA, FB, T = 4, 8, 16, 32, 48, 64, 80, 96, 112, 124, 136
    FW = 3
    a(f"""
P1_DONE:
s_lshl_b32 s48, s28, 2
s_add_u32 s48, s48, s30
s_and_b32 s49, s27, 3
s_lshr_b32 s50, s27, 2
s_lshl_b32 s51, s31, 3
s_lshl_b32 s52, s49, 1
s_add_u32 s51, s51, s52
s_lshl_b32 s52, s48, 16
s_lshl_b32 s53, s51, 10
s_add_u32 s52, s52, s53
s_lshl_b32 s54, s48, 17
s_add_u32 s54, s54, {WS_KV:#x}
s_lshl_b32 s55, s50, 16
s_lshl_b32 s56, s49, 10
s_add_u32 s56, s56, s55
s_lshl_b32 s57, s31, 14
s_add_u32 s57, s57, s56
s_and_b32 s57, s57, 0x1ffff
s_mov_b32 m0, s56
v_add_u32 v13, s55, v3
v_mov_b32 v12, 0xdddddddd
v_and_b32 v14, 27, v2
v_cmp_eq_u32 vcc, 16, v14
v_mov_b32 v15, 0x3f803f80
s_mov_b32 s58, 0xffff
s_mov_b32 s59, 0xffff
v_cndmask_b32 v14, 0, v15, vcc
v_mov_b32 v15, v14
""")
    for F in (FA, FB):
        for i in range(4): a(f"v_mov_b64 {vr(F+4+2*i,2)}, v[14:15]")
    for i in range(16): a(f"v_mov_b64 {vr(O0+2*i,2)}, 0")
    a(f"""
s_min_u32 s60, s29, 27
s_mul_i32 s61, s28, 28
s_add_u32 s60, s60, s61
v_mul_u32_u24 v{T}, 3584, v2
s_mul_i32 s61, s27, {64*3584}
s_lshl_b32 s62, s60, 4
s_add_u32 s61, s61, s62
s_lshl_b32 s62, s60, 13
s_lshl_b32 s63, s27, 10
s_add_u32 s62, s62, s63
""")
    srd(a, 36, 14, 512*3584); srd(a, 40, 16, 512*3584); srd(a, 44, 18, 512*3584)
    a(f"""
s_cmp_lg_u32 s27, 0
s_cbranch_scc1 P1_POLLED
s_lshr_b32 s64, s48, 1
s_lshl_b32 s64, s64, 8
s_add_u32 s64, s64, {WS_F1:#x}
v_lshlrev_b32 v4, 2, v2
s_mov_b32 s65, {POLL_MAX}
P1_POLL:
s_sleep {SL1}
buffer_load_dword v5, v4, s[32:35], s64 offen sc1
s_sub_u32 s65, s65, 1
s_cbranch_scc1 P1_POLLED
s_waitcnt vmcnt(0)
v_cmp_ne_u32 vcc, s26, v5
s_cbranch_vccnz P1_POLL
P1_POLLED:
s_barrier
""")
    stamp(a, 4)
    def dma_group():
        return ["s_add_u32 s64, s54, s57", "s_add_u32 s57, s57, 4096", "s_and_b32 s57, s57, 0x1ffff",
                "buffer_load_dwordx4 v3, s[32:35], s64 offen sc1 lds", "s_add_u32 m0, m0, 4096"]
    a(f"buffer_load_dwordx4 {vr(Q0,4)}, v3, s[32:35], s52 offen sc1")
    a(f"buffer_load_dwordx4 {vr(Q1,4)}, v3, s[32:35], s52 offen offset:1024 sc1")
    for g in range(3):
        for x in dma_group(): a(x)
    a(f"""
s_waitcnt vmcnt(0)
s_barrier
ds_read_b128 {vr(FB,4)}, v3
ds_read_b128 {vr(FA,4)}, v13
s_mov_b64 exec, s[58:59]
ds_read_b128 {vr(FA+4,4)}, v13 offset:1024
ds_read_b128 {vr(FA+8,4)}, v13 offset:1280
s_mov_b64 exec, -1
s_waitcnt lgkmcnt(3)
v_mfma_f32_32x32x16_bf16 {vr(S0,16)}, {vr(FB,4)}, {vr(Q0,4)}, 0
v_mfma_f32_32x32x16_bf16 {vr(S1,16)}, {vr(FB,4)}, {vr(Q1,4)}, 0
s_nop 10
""")
    stamp(a, 5)
    for S, M, t in ((S0, M0, T+1), (S1, M1, T+3)):
        a(f"v_max3_f32 v{t}, v{S}, v{S+1}, v{S+2}")
        for i in range(6): a(f"v_max3_f32 v{t}, v{t}, v{S+3+2*i}, v{S+4+2*i}")
        a(f"v_max_f32 v{t}, v{t}, v{S+15}\nv_mov_b32 v{t+1}, v{t}\ns_nop 1\nv_permlane32_swap_b32 v{t+1}, v{t}\ns_nop 1")
        a(f"v_max_f32 v{t}, v{t}, v{t+1}\nv_mul_f32 v{M}, -1.0, v{t}\nv_mul_f32 v{M+1}, -1.0, v{t}")
        for i in range(1, 8): a(f"v_mov_b64 {vr(M+2*i,2)}, {vr(M,2)}")
        if S == S0:
            a(f"s_nop 0\ns_waitcnt lgkmcnt(0)\nv_mfma_f32_32x32x16_bf16 {vr(S0,16)}, {vr(FA,4)}, {vr(Q0,4)}, {vr(M0,16)}")
    def smf(o, v, p): return f"v_smfmac_f32_32x32x32_bf16 {vr(o,16)}, {vr(v,4)}, {vr(p,8)}, v12"
    def qk(d, k, q, mn): return f"v_mfma_f32_32x32x16_bf16 {vr(d,16)}, {vr(k,4)}, {vr(q,4)}, {vr(mn,16)}"
    def iteration(first, peeled, extras):
        ex = list(extras)
        for kt in range(4):
            F = FA if kt % 2 == 0 else FB
            G = FB if kt % 2 == 0 else FA
            for q in range(2):
                cur, nxt = (S0, S1) if q == 0 else (S1, S0)
                Oc, On = (O0, O1) if q == 0 else (O1, O0)
                for i in range(16):
                    if i == 2:
                        if not (first and kt == 0 and q == 0):
                            a(smf(On, (G if q == 0 else F) + 8, nxt + 8))
                        if q == 0:
                            o = (kt+1)*2048
                            a(f"ds_read_b128 {vr(G,4)}, v13 offset:{o}")
                            a("s_mov_b64 exec, s[58:59]")
                            a(f"ds_read_b128 {vr(G+4,4)}, v13 offset:{o+1024}")
                            a(f"ds_read_b128 {vr(G+8,4)}, v13 offset:{o+1280}")
                            a("s_mov_b64 exec, -1")
                    if i == PQ:
                        if q == 1: a("s_waitcnt lgkmcnt(0)")
                        a(qk(nxt, F if q == 0 else G, Q1 if q == 0 else Q0, M1 if q == 0 else M0))
                    if i == PS:
                        a(smf(Oc, F + 4, cur))
                        if kt == 3 and q == 1:
                            a("v_add_u32 v13, 0x2000, v13")
                            if not peeled: a("s_add_u32 s66, s66, 1\ns_cmp_lg_u32 s66, s67")
                    if i in (8, 14) and ex:
                        for x in ex.pop(0): a(x)
                    a(f"v_exp_f32 v{cur+i}, v{cur+i}")
        assert not ex
    ffn_dma = [[f"s_add_u32 m0, s63, {L_FG:#x}", "s_nop 0", f"buffer_load_dwordx4 v{T}, s[36:39], s61 offen lds"],
               [f"s_add_u32 m0, s63, {L_FU:#x}", "s_nop 0", f"buffer_load_dwordx4 v{T}, s[40:43], s61 offen lds"],
               [f"s_add_u32 m0, s63, {L_FD:#x}", "s_nop 0", f"buffer_load_dwordx4 v3, s[44:47], s62 offen lds"]]
    iteration(True, True, [dma_group() for _ in range(6)])
    a(f"""
s_waitcnt vmcnt(0)
s_barrier
""")
    stamp(a, 6)
    stampc(a, 7)
    iteration(False, True, [dma_group() for _ in range(7)] + [[]]*3 + sum([[x, []] for x in ffn_dma], []))
    KG = T+8
    a(f"""
s_mov_b32 s66, 2
s_mov_b32 s67, 4
s_cmp_lg_u32 s27, {FW}
s_cbranch_scc1 P2_LOOP
s_mov_b32 s67, 3
s_mov_b32 s68, {POLL_MAX}
P2_KEYLD:
s_mov_b32 s64, {WS_KG:#x}
buffer_load_dwordx4 {vr(KG,4)}, v3, s[32:35], s64 offen sc1
buffer_load_dwordx4 {vr(KG+4,4)}, v3, s[32:35], s64 offen offset:1024 sc1
s_cmp_eq_u32 s66, 3
s_cbranch_scc1 P2_KEYS
P2_LOOP:
""")
    iteration(False, False, [])
    a(f"""
s_cbranch_scc1 P2_LOOP
s_cmp_eq_u32 s66, 8
s_cbranch_scc1 P2_FIN
s_cmp_eq_u32 s66, 4
s_cbranch_scc1 P2_MID
P2_KEYS:
s_waitcnt vmcnt(0)
v_cmp_ne_u32 vcc, s26, v{KG+1}
v_cmp_ne_u32 s[64:65], s26, v{KG+3}
s_or_b64 vcc, vcc, s[64:65]
v_cmp_ne_u32 s[64:65], s26, v{KG+5}
s_or_b64 vcc, vcc, s[64:65]
v_cmp_ne_u32 s[64:65], s26, v{KG+7}
s_or_b64 vcc, vcc, s[64:65]
s_sub_u32 s68, s68, 1
s_cbranch_scc1 P2_KEYOK
s_cbranch_vccnz P2_KEYLD
P2_KEYOK:
v_max3_u32 v{KG}, v{KG}, v{KG+2}, v{KG+4}
v_max_u32 v{KG}, v{KG}, v{KG+6}
""")
    umax_reduce64(a, KG, KG+1)
    srd(a, 36, 4, 0x200000)
    a(f"""
v_readfirstlane_b32 s64, v{KG}
v_mov_b32 v{KG+1}, {L_MISC:#x}
s_mov_b32 s67, 4
ds_write_b32 v{KG+1}, v{KG}
s_and_b32 s64, s64, 0x7ff
s_sub_u32 s64, 0x7ff, s64
s_mov_b32 m0, {L_XS:#x}
s_lshl_b32 s64, s64, 10
buffer_load_dwordx4 v3, s[36:39], s64 offen lds
s_branch P2_LOOP
P2_MID:
s_mov_b32 s67, 8
""")
    srd(a, 36, 8, 0x80000)
    a(f"""
s_add_u32 s69, s30, s31
s_and_b32 s69, s69, 3
v_lshrrev_b32 v{T+1}, 3, v2
v_and_b32 v{T+2}, 7, v2
v_lshlrev_b32 v{T+3}, 1, v{T+1}
v_and_b32 v{T+3}, 4, v{T+3}
v_xor_b32 v{T+2}, v{T+2}, v{T+3}
v_lshlrev_b32 v{T+2}, 4, v{T+2}
v_lshl_add_u32 v{T+1}, v{T+1}, 10, v{T+2}
s_lshl_b32 s70, s31, 7
s_lshl_b32 s71, s27, 13
s_add_u32 s70, s70, s71
s_waitcnt vmcnt(0) lgkmcnt(0)
s_barrier
""")
    for n in range(3):
        a(f"""s_add_u32 s64, s69, {n}
s_and_b32 s64, s64, 3
s_lshl_b32 s64, s64, 17
s_add_u32 m0, s63, {WO_SLOTS[n]:#x}
s_add_u32 s64, s64, s70
buffer_load_dwordx4 v{T+1}, s[36:39], s64 offen lds
s_add_u32 m0, s63, {WO_SLOTS[n]+0x2000:#x}
s_add_u32 s64, s64, 0x10000
buffer_load_dwordx4 v{T+1}, s[36:39], s64 offen lds""")
    a(f"""
s_cmp_lg_u32 s27, {FW}
s_cbranch_scc1 P2_LOOP
s_cmp_gt_u32 s29, 27
s_cbranch_scc1 P2_LOOP
""")
    A = T+4; R = T+8; D = T+40; H = T+44; YA = T+56
    a(f"""
v_lshrrev_b32 v{A}, 4, v2
v_lshlrev_b32 v{A+1}, 4, v{A}
v_add_u32 v{A+1}, {L_XS:#x}, v{A+1}
v_bfe_u32 v{A+2}, v2, 2, 2
v_lshl_add_u32 v{A}, v{A}, 3, v{A+2}
v_lshlrev_b32 v{A}, 4, v{A}
v_bfe_u32 v{A+3}, v2, 1, 1
v_lshl_add_u32 v{A}, v{A+3}, 13, v{A}
v_and_b32 v{A+3}, 1, v2
v_lshl_add_u32 v{A}, v{A+3}, 3, v{A}
v_add_u32 v{A}, {L_FG:#x}, v{A}
v_bfe_u32 v{A+3}, v2, 4, 1
v_lshl_add_u32 v{A+2}, v{A+3}, 2, v{A+2}
v_lshlrev_b32 v{A+2}, 10, v{A+2}
v_and_b32 v{A+3}, 3, v2
v_lshl_add_u32 v{A+2}, v{A+3}, 3, v{A+2}
v_add_u32 v{A+2}, {L_FD:#x}, v{A+2}
""")
    for blk in range(4):
        for s in range(4):
            ks = blk*4+s; b = R + 8*s
            a(f"ds_read_b64_tr_b16 {vr(b,2)}, v{A} offset:{ks*512}")
            a(f"ds_read_b64_tr_b16 {vr(b+2,2)}, v{A} offset:{ks*512+64}")
            a(f"ds_read_b128 {vr(b+4,4)}, v{A+1} offset:{ks*64}")
        for s in range(4):
            ks = blk*4+s; b = R + 8*s
            a(f"s_waitcnt lgkmcnt({9-3*s})")
            a(f"v_mfma_f32_16x16x32_bf16 {vr(D,4)}, {vr(b,4)}, {vr(b+4,4)}, {vr(D,4) if ks else 0}")
    for q in range(16): a(f"ds_read_b64_tr_b16 {vr(R+2*q,2)}, v{A+2} offset:{q*32}")
    for r in range(4): a(f"v_mov_b32 v{H+r}, v{D+r}")
    a("s_nop 1")
    for r in range(4): a(f"v_permlane32_swap_b32 v{H+r}, v{D+r}")
    a("s_nop 1")
    for r in range(4): a(f"v_mul_f32 v{H+4+r}, {f32bits(-LOG2E):#x}, v{H+r}")
    for r in range(4): a(f"v_exp_f32 v{H+4+r}, v{H+4+r}")
    for r in range(4): a(f"v_mul_f32 v{H+r}, v{H+r}, v{D+r}")
    for r in range(4): a(f"v_add_f32 v{H+4+r}, 1.0, v{H+4+r}")
    for r in range(4): a(f"v_rcp_f32 v{H+4+r}, v{H+4+r}")
    a("s_nop 0")
    for r in range(4): a(f"v_mul_f32 v{H+r}, v{H+r}, v{H+4+r}")
    a(f"v_cvt_pk_bf16_f32 v{D}, v{H}, v{H+1}\nv_cvt_pk_bf16_f32 v{D+1}, v{H+2}, v{H+3}")
    for j in range(4): a(f"v_mov_b64 {vr(H+2*j,2)}, 0")
    a("s_mov_b32 exec_hi, 0")
    for j in range(4):
        a(f"s_mov_b32 exec_lo, {(0xf << (4*j)) * 0x10001:#x}\nv_mov_b64 {vr(H+2*j,2)}, {vr(D,2)}")
    a("s_mov_b64 exec, -1\ns_nop 1")
    for half in range(2):
        if half:
            for q in range(16): a(f"ds_read_b64_tr_b16 {vr(R+2*q,2)}, v{A+2} offset:{512+q*32}")
        a("s_waitcnt lgkmcnt(0)")
        for j in range(4):
            for Qn in range(4):
                acc = vr(YA + 4*(half*4+Qn), 4)
                a(f"v_mfma_f32_16x16x16_bf16 {acc}, {vr(H+2*j,2)}, {vr(R+2*(Qn*4+j),2)}, {acc if j else 0}")
    a(f"v_lshlrev_b32 v{A}, 2, v2\ns_mov_b32 s64, {WS_Y:#x}\ns_nop 7")
    for Qn in range(8):
        a(f"buffer_atomic_add_f32 v{YA+4*Qn}, v{A}, s[32:35], s64 offen offset:{Qn*256}")
    a("s_branch P2_LOOP")
    a(f"""
P2_FIN:
s_nop 1
{smf(O1, FB+8, S1+8)}
""")
    stampc(a, 7)
    stamp(a, 8)
    a(f"""
s_lshl_b32 s64, s27, 11
s_xor_b32 s65, s64, 0x2000
v_add_u32 v14, s64, v3
v_add_u32 v15, s65, v3
s_lshr_b32 s64, s64, 3
s_lshr_b32 s65, s65, 3
v_lshlrev_b32 v{T+2}, 2, v2
v_add_u32 v{T+3}, s65, v{T+2}
v_add_u32 v{T+2}, s64, v{T+2}
v_add_u32 v14, {L_OX:#x}, v14
v_add_u32 v15, {L_OX:#x}, v15
v_add_u32 v{T+2}, {L_LS:#x}, v{T+2}
v_add_u32 v{T+3}, {L_LS:#x}, v{T+3}
s_cmp_eq_u32 s50, 0
s_cbranch_scc1 P2_X0
ds_write_b128 v14, {vr(O0,4)}
ds_write_b128 v14, {vr(O0+4,4)} offset:1024
ds_write_b32 v{T+2}, v{O0+8}
""")
    for i in range(5): a(f"v_mov_b64 {vr(O0+2*i,2)}, {vr(O1+2*i,2)}")
    for i in range(2): a(f"v_mov_b64 {vr(Q0+2*i,2)}, {vr(Q1+2*i,2)}")
    a(f"""
s_branch P2_X1
P2_X0:
ds_write_b128 v14, {vr(O1,4)}
ds_write_b128 v14, {vr(O1+4,4)} offset:1024
ds_write_b32 v{T+2}, v{O1+8}
P2_X1:
s_add_u32 s51, s51, s50
s_lshl_b32 s52, s51, 5
s_add_u32 s52, s52, s48
s_lshl_b32 s53, s52, 10
s_add_u32 s53, s53, {WS_OF:#x}
s_lshl_b32 s52, s52, 2
s_add_u32 s52, s52, {WS_F2:#x}
s_waitcnt lgkmcnt(0)
s_barrier
ds_read_b128 {vr(S0,4)}, v15
ds_read_b128 {vr(S0+4,4)}, v15 offset:1024
ds_read_b32 v{S0+8}, v{T+3}
s_mov_b32 s68, 0
s_waitcnt lgkmcnt(0)
v_add_f32 v{O0+8}, v{O0+8}, v{S0+8}
""")
    for i in range(4): a(f"v_pk_add_f32 {vr(O0+2*i,2)}, {vr(O0+2*i,2)}, {vr(S0+2*i,2)}")
    a(f"""
P2_NORM:
v_rcp_f32 v{T+2}, v{O0+8}
v_cmp_ngt_f32 vcc, {f32bits(2.0**40):#x}, v{O0+8}
""")
    for i in range(8): a(f"v_mul_f32 v{O0+i}, v{O0+i}, v{T+2}")
    a(f"""
v_add_f32 v{T+3}, |v{O0}|, |v{O0+1}|
v_add_f32 v{T+4}, |v{O0+2}|, |v{O0+3}|
v_add_f32 v{T+5}, |v{O0+4}|, |v{O0+5}|
v_add_f32 v{T+6}, |v{O0+6}|, |v{O0+7}|
v_add3_f32_PLACEHOLDER
""".replace("v_add3_f32_PLACEHOLDER", f"v_add_f32 v{T+3}, v{T+3}, v{T+4}\nv_add_f32 v{T+5}, v{T+5}, v{T+6}\nv_add_f32 v{T+3}, v{T+3}, v{T+5}"))
    a(f"s_mov_b64 s[64:65], vcc\nv_cmp_ngt_f32 vcc, 0x7f800000, v{T+3}")
    for i in range(4): a(f"v_cvt_pk_bf16_f32 v{S0+i}, v{O0+2*i}, v{O0+2*i+1}")
    a(f"""
s_or_b64 vcc, vcc, s[64:65]
s_cmp_lg_u32 s68, 0
s_cbranch_scc1 P2_STORE
s_cbranch_vccnz P2_FALLBACK
P2_STORE:
buffer_store_dwordx4 {vr(S0,4)}, v3, s[32:35], s53 offen sc1
v_mov_b32 v{T+2}, s26
v_mov_b32 v{T+3}, 0
s_lshl_b32 s64, s2, 2
s_add_u32 s64, s64, {WS_F3:#x}
s_cmp_lt_u32 s27, 4
s_cbranch_scc1 P3_COMPUTE
s_waitcnt vmcnt(0)
s_mov_b64 exec, 1
buffer_store_dword v{T+2}, v{T+3}, s[32:35], s52 offen sc1
s_mov_b64 exec, -1
""")
    stamp(a, 9)
    a(f"""
s_add_u32 s64, s69, 3
s_and_b32 s64, s64, 3
s_lshl_b32 s64, s64, 17
s_lshl_b32 s65, s31, 7
s_add_u32 s64, s64, s65
s_lshl_b32 s65, s49, 15
s_add_u32 s64, s64, s65
s_lshl_b32 s65, s49, 12
s_add_u32 m0, s65, {WO_SLOTS[3]:#x}
s_and_b32 s70, s49, 1
""")
    for i in range(4):
        a(f"buffer_load_dwordx4 v{T+1}, s[36:39], s64 offen offset:{i*1024} lds")
        if i < 3: a("s_add_u32 s64, s64, 7168")
    a(f"""
s_lshl_b32 s71, s48, 1
s_add_u32 s71, s71, s70
s_lshl_b32 s72, s71, 7
s_add_u32 s72, s72, {WS_F2:#x}
v_and_b32 v4, 31, v2
v_lshlrev_b32 v4, 2, v4
s_mov_b32 s68, {POLL_MAX}
P3_POLL:
s_sleep {SL2}
buffer_load_dword v5, v4, s[32:35], s72 offen sc1
s_sub_u32 s68, s68, 1
s_cbranch_scc1 P3_POLLED
s_waitcnt vmcnt(0)
v_cmp_ne_u32 vcc, s26, v5
s_cbranch_vccnz P3_POLL
P3_POLLED:
""")
    stamp(a, 10)
    a(f"""
s_lshl_b32 s71, s71, 15
s_lshr_b32 s72, s49, 1
s_lshl_b32 s72, s72, 12
s_add_u32 s71, s71, s72
s_add_u32 s71, s71, {WS_OF:#x}
s_lshl_b32 s70, s70, 13
s_add_u32 s70, s70, s72
""")
    for n in range(4):
        a(f"""s_add_u32 s64, s69, {n}
s_and_b32 s64, s64, 3
s_lshl_b32 s64, s64, 13
s_add_u32 m0, s70, {OF_SLOTS[n]:#x}
s_add_u32 s64, s64, s71""")
        for i in range(4): a(f"buffer_load_dwordx4 v3, s[32:35], s64 offen offset:{i*1024} sc1 lds")
    for n in range(4): a(f"s_waitcnt vmcnt({12-4*n})\ns_barrier")
    endpgm(a)
    ACC = 64; X = 80; Y = 88; FR = 16; T3 = 104
    tbl_wo = sum((WO_SLOTS[n] >> 14) << (4*n) for n in range(4))
    tbl_of = sum((OF_SLOTS[n] >> 14) << (4*n) for n in range(4))
    a(f"""
P3_COMPUTE:
s_and_b32 s70, s27, 1
s_lshr_b32 s71, s27, 1
v_lshrrev_b32 v4, 5, v2
v_and_b32 v5, 31, v2
s_lshl_b32 s72, s48, 6
s_lshl_b32 s73, s70, 5
s_add_u32 s72, s72, s73
v_add_u32 v12, s72, v5
s_lshl_b32 s73, s31, 6
s_lshl_b32 s74, s71, 5
s_add_u32 s73, s73, s74
v_lshl_add_u32 v13, v4, 4, s73
v_lshlrev_b32 v14, 10, v12
v_lshl_add_u32 v14, v13, 1, v14
v_lshlrev_b32 v15, 2, v12
v_lshlrev_b32 v13, 2, v13
v_mov_b32 v6, {L_MISC:#x}
ds_read_b32 v{T3}, v6
""")
    srd(a, 40, 4, 0x200000)
    srd(a, 44, 22, 0x200000)
    a(f"""
s_mov_b32 s74, {WS_G:#x}
s_waitcnt vmcnt(0)
s_mov_b64 exec, 1
buffer_store_dword v{T+2}, v{T+3}, s[32:35], s52 offen sc1
s_cmp_lg_u32 s27, {FW}
s_cbranch_scc1 P3_NOF3
buffer_store_dword v{T+2}, v{T+3}, s[32:35], s64 offen sc1
P3_NOF3:
s_mov_b64 exec, -1
""")
    stamp(a, 9)
    a(f"""
buffer_load_dword v{T3+1}, v15, s[32:35], s74 offen sc1
buffer_load_dwordx4 {vr(X,4)}, v14, s[40:43], 0 offen
buffer_load_dwordx4 {vr(X+4,4)}, v14, s[40:43], 0 offen offset:16
s_lshl_b32 s72, s70, 13
v_add_u32 v10, s72, v3
v_bfe_u32 v6, v2, 2, 2
v_lshl_add_u32 v7, v4, 2, v6
v_lshlrev_b32 v7, 7, v7
v_lshrrev_b32 v6, 1, v6
v_xor_b32 v6, s71, v6
v_lshl_add_u32 v7, v6, 6, v7
v_and_b32 v6, 1, v2
v_lshl_add_u32 v7, v6, 5, v7
v_bfe_u32 v6, v2, 4, 1
v_lshl_add_u32 v7, v6, 4, v7
v_bfe_u32 v6, v2, 1, 1
v_lshl_add_u32 v11, v6, 3, v7
""")
    for i in range(8): a(f"v_mov_b64 {vr(ACC+2*i,2)}, 0")
    a(f"""
s_waitcnt lgkmcnt(0)
v_and_b32 v{T3+2}, 0x7ff, v{T3}
v_sub_u32 v{T3+2}, 0x7ff, v{T3+2}
v_cmp_eq_u32 s[76:77], v{T3+2}, v12
v_and_b32 v{T3}, 0xffff0000, v{T3}
v_ashrrev_i32 v{T3+3}, 31, v{T3}
v_not_b32 v{T3+3}, v{T3+3}
v_or_b32 v{T3+3}, 0x80000000, v{T3+3}
v_xor_b32 v{T3}, v{T3}, v{T3+3}
v_and_b32 v{T3}, 0xffff0000, v{T3}
v_mul_f32 v{T3}, {f32bits(-LOG2E):#x}, v{T3}
v_exp_f32 v{T3}, v{T3}
s_waitcnt vmcnt(0)
v_sub_f32 v{T3+4}, 1.0, v{T3+1}
v_add_f32 v{T3}, 1.0, v{T3}
v_rcp_f32 v{T3}, v{T3}
""")
    B = 48
    for i in range(8):
        a(f"v_lshlrev_b32 v{B+2*i}, 16, v{X+i}\nv_and_b32 v{B+2*i+1}, 0xffff0000, v{X+i}")
    a(f"""
s_cmp_eq_u64 s[76:77], 0
s_cbranch_scc1 P3_NOSEL
s_mov_b32 s74, {WS_F3:#x}
s_mov_b32 s68, {POLL_MAX}
P3_POLL3:
s_sleep {SL2}
buffer_load_dwordx4 {vr(Y,4)}, v3, s[32:35], s74 offen sc1
s_sub_u32 s68, s68, 1
s_cbranch_scc1 P3_POLLED3
s_waitcnt vmcnt(0)
v_cmp_ne_u32 vcc, s26, v{Y}
v_cmp_ne_u32 s[64:65], s26, v{Y+1}
s_or_b64 vcc, vcc, s[64:65]
v_cmp_ne_u32 s[64:65], s26, v{Y+2}
s_or_b64 vcc, vcc, s[64:65]
v_cmp_ne_u32 s[64:65], s26, v{Y+3}
s_or_b64 vcc, vcc, s[64:65]
s_cbranch_vccnz P3_POLL3
P3_POLLED3:
s_mov_b32 s74, {WS_Y:#x}
s_mov_b64 exec, s[76:77]
""")
    for i in range(4): a(f"buffer_load_dwordx4 {vr(Y+4*i,4)}, v13, s[32:35], s74 offen offset:{16*i} sc1")
    a("s_waitcnt vmcnt(0)")
    for i in range(16): a(f"v_fmac_f32 v{B+i}, v{Y+i}, v{T3}")
    a("s_mov_b64 exec, -1\nP3_NOSEL:")
    for i in range(16): a(f"v_mul_f32 v{B+i}, v{B+i}, v{T3+4}")
    a(f"""
s_mov_b32 s72, {tbl_wo:#x}
s_mov_b32 s73, {tbl_of:#x}
P3_LOOP:
s_and_b32 s74, s72, 15
s_lshl_b32 s74, s74, 14
s_and_b32 s75, s73, 15
s_lshl_b32 s75, s75, 14
v_add_u32 v8, s75, v10
v_add_u32 v9, s74, v11
s_lshr_b32 s72, s72, 4
s_barrier
""")
    def reads3(hh):
        b = FR + 8*(hh % 4)
        a(f"ds_read_b128 {vr(b,4)}, v8 offset:{hh*1024}")
        a(f"ds_read_b64_tr_b16 {vr(b+4,2)}, v9 offset:{hh*2048}")
        a(f"ds_read_b64_tr_b16 {vr(b+6,2)}, v9 offset:{hh*2048+1024}")
    for hh in range(4): reads3(hh)
    for hh in range(8):
        b = FR + 8*(hh % 4)
        a(f"s_waitcnt lgkmcnt({3*min(3, 7-hh)})")
        a(f"v_mfma_f32_32x32x16_bf16 {vr(ACC,16)}, {vr(b+4,4)}, {vr(b,4)}, {vr(ACC,16)}")
        if hh + 4 < 8: reads3(hh+4)
    a(f"""
s_lshr_b32 s73, s73, 4
s_cbranch_scc1 P3_LOOP
s_nop 10
""")
    stamp(a, 10)
    for i in range(16): a(f"v_fmac_f32 v{B+i}, v{ACC+i}, v{T3+1}")
    for i in range(8): a(f"v_cvt_pk_bf16_f32 v{X+i}, v{B+2*i}, v{B+2*i+1}")
    a(f"""
buffer_store_dwordx4 {vr(X,4)}, v14, s[44:47], 0 offen
buffer_store_dwordx4 {vr(X+4,4)}, v14, s[44:47], 0 offen offset:16
s_or_b32 s64, s2, s27
s_cbranch_scc1 L_END
s_mov_b32 s64, {WS_E:#x}
s_mov_b64 exec, 1
buffer_store_dword v{T+2}, v{T+3}, s[32:35], s64 offen sc1
L_END:
""")
    endpgm(a)
    a("L_EXIT:\ns_endpgm")
    a(f"""
P2_FALLBACK:
s_mov_b32 s68, 1
s_mov_b32 s64, s54
s_add_u32 s65, s54, 0x20000
v_mov_b32 v{T+2}, 0xff800000
FB_MAX:
buffer_load_dwordx4 {vr(FA,4)}, v3, s[32:35], s64 offen sc1
s_add_u32 s64, s64, 2048
s_waitcnt vmcnt(0)
v_mfma_f32_32x32x16_bf16 {vr(S0,16)}, {vr(FA,4)}, {vr(Q0,4)}, 0
s_nop 15
""")
    for i in range(8): a(f"v_max3_f32 v{T+2}, v{T+2}, v{S0+2*i}, v{S0+2*i+1}")
    a(f"""
s_cmp_lt_u32 s64, s65
s_cbranch_scc1 FB_MAX
v_mov_b32 v{T+3}, v{T+2}
s_nop 1
v_permlane32_swap_b32 v{T+3}, v{T+2}
s_nop 1
v_max_f32 v{T+2}, v{T+2}, v{T+3}
""")
    for i in range(16): a(f"v_mul_f32 v{M0+i}, -1.0, v{T+2}")
    for i in range(8): a(f"v_mov_b64 {vr(O0+2*i,2)}, 0")
    a(f"""
s_mov_b32 s64, s54
FB_ACC:
buffer_load_dwordx4 {vr(FA,4)}, v3, s[32:35], s64 offen sc1
s_mov_b64 exec, s[58:59]
buffer_load_dwordx4 {vr(FA+4,4)}, v3, s[32:35], s64 offen offset:1024 sc1
buffer_load_dwordx4 {vr(FA+8,4)}, v3, s[32:35], s64 offen offset:1280 sc1
s_mov_b64 exec, -1
s_add_u32 s64, s64, 2048
s_waitcnt vmcnt(0)
{qk(S0, FA, Q0, M0)}
s_nop 15
""")
    for i in range(16): a(f"v_exp_f32 v{S0+i}, v{S0+i}")
    a(f"""
s_nop 1
{smf(O0, FA+4, S0)}
{smf(O0, FA+8, S0+8)}
s_cmp_lt_u32 s64, s65
s_cbranch_scc1 FB_ACC
s_nop 15
s_branch P2_NORM
""")
    return name

def main():
    body = Asm()
    name = gen(body)
    vg, sg = (256, 100) if STAMP else (232, 80)
    out = f"""; generated by gen/gen2.py (own generator script)
; @launch grid=(256,1,1) block=(512,1,1) lds={LDS_BYTES}
.amdgcn_target "amdgcn-amd-amdhsa--gfx950"
.text
""" + body.text() + f""".section .rodata,"a"
.p2align 6
.amdhsa_kernel {name}
  .amdhsa_next_free_vgpr {vg}
  .amdhsa_next_free_sgpr {sg}
  .amdhsa_accum_offset {vg}
  .amdhsa_group_segment_fixed_size 0
  .amdhsa_kernarg_size 96
  .amdhsa_user_sgpr_count 2
  .amdhsa_user_sgpr_kernarg_segment_ptr 1
  .amdhsa_system_sgpr_workgroup_id_x 1
.end_amdhsa_kernel
"""
    if EXP & 1:
        out = out.replace("v[136:139], v22,", "v[136:139], v3,").replace("v[140:143], v22,", "v[140:143], v3,")
        out = out.replace("v[144:147], v23, s[32:35], s59 offen offset:1024", "v[144:147], v3, s[32:35], s59 offen offset:1024").replace("v[148:151], v23, s[32:35], s59 offen offset:1280", "v[148:151], v3, s[32:35], s60 offen offset:1024")
    if EXP & 2:
        for r in ("v[136:139]", "v[140:143]", "v[144:147]", "v[148:151]", "v[128:131]", "v[132:135]"):
            out = "\n".join((l.replace(" sc1", "") if ("buffer_store_dwordx4 " + r) in l else l) for l in out.split("\n"))
    if EXP & 4:
        out = "\n".join(l for l in out.split("\n") if not ("buffer_store_dwordx4 v[128:131]" in l or "buffer_store_dwordx4 v[132:135]" in l))
    path = sys.argv[1] if len(sys.argv) > 1 else f"cdna_kernels/{NAME}.s"
    open(path, "w").write(out)
main()
```

```python
import math, struct, sys, os

NAME = "gated_mix__mha_block__moe_arch_mod__prompt"
STAMP = bool(os.environ.get("STAMP"))
EXP = int(os.environ.get("EXP", "0"))

WS_QF = 0x000000
WS_KV = 0x200000
WS_OF = 0x600000
WS_G  = 0x800000
WS_Y  = 0x803000
WS_F1 = 0x810000
WS_F2 = 0x812000
WS_F3 = 0x815000
WS_KG = 0x816000
WS_E  = 0x818000
WS_SIZE = 0x10000000
POLL_MAX = 1 << 18

L_FG = 0x20000; L_FU = 0x22000; L_FD = 0x24000; L_XS = 0x26000
L_LS = 0x26800
L_MISC = 0x27000
L_OX = 0x14000
WO_SLOTS = [0x0000, 0x4000, 0x10000, 0x8000]
OF_SLOTS = [0xC000, 0x18000, 0x1C000, 0x20000]
LDS_BYTES = 0x28000

def f32bits(x): return struct.unpack("<I", struct.pack("<f", x))[0]
LOG2E = 1.4426950408889634
QSCALE = 0.25 * LOG2E

class Asm:
    def __init__(self): self.l = []
    def __call__(self, s):
        for line in s.strip("\n").split("\n"):
            line = line.strip()
            if not line: continue
            if line.endswith(":") : self.l.append(line)
            else: self.l.append("    " + line)
    def text(self): return "\n".join(self.l) + "\n"

def vr(a, n): return f"v[{a}:{a+n-1}]"
def srd(a, d, lo, nbytes):
    a(f"s_mov_b32 s{d}, s{lo}\ns_mov_b32 s{d+1}, s{lo+1}\ns_mov_b32 s{d+2}, {nbytes:#x}\ns_mov_b32 s{d+3}, 0x00020000")

NST = 14
LEAK = os.environ.get('LEAK', '').split(',') if os.environ.get('LEAK') else None
DBGST = int(os.environ.get('DBGST', '0'))
SL1 = int(os.environ.get('SL1', '4')); SL2 = int(os.environ.get('SL2', '4'))
PQ = int(os.environ.get('PQ', '5')); PS = int(os.environ.get('PS', '11'))
def stamp(a, slot):
    if not STAMP: return
    a(f"s_memrealtime s[82:83]\ns_waitcnt lgkmcnt(0)\ns_mov_b32 s{86+slot}, s82")
def stampc(a, slot):
    if not STAMP: return
    a(f"s_memtime s[82:83]\ns_waitcnt lgkmcnt(0)\ns_sub_u32 s{86+slot}, s82, s{86+slot}")
def endpgm(a):
    if STAMP:
        a(f"""s_waitcnt vmcnt(0)
s_memrealtime s[82:83]
s_waitcnt lgkmcnt(0)
s_mov_b64 exec, 1
s_lshl_b32 s79, s2, 3
s_add_u32 s79, s79, s27
s_lshl_b32 s79, s79, 6
s_add_u32 s79, s79, 0x1000000
v_mov_b32 v249, s79
v_mov_b32 v232, s80
v_mov_b32 v233, s82""")
        for i in range(NST): a(f"v_mov_b32 v{234+i}, s{86+i}")
        for i in range(4): a(f"global_store_dwordx4 v249, {vr(232+4*i,4)}, s[24:25] offset:{16*i}")
        if LEAK:
            lo, hi = LEAK
            reg = lambda k: {"start": "s80", "end": "s82"}.get(k, f"s{86+int(k)}" if k.isdigit() else None)
            lab = f"L_LK{len(a.l)}"
            a(f"s_cmp_lg_u32 s2, 0\ns_cbranch_scc1 {lab}\ns_cmp_lg_u32 s27, 0\ns_cbranch_scc1 {lab}")
            a(f"s_sub_u32 s4, {reg(hi)}, {reg(lo)}\ns_lshl_b32 s4, s4, 1\n{lab}_w:\ns_memrealtime s[6:7]\ns_waitcnt lgkmcnt(0)\ns_sub_u32 s5, s6, s82\ns_cmp_lt_u32 s5, s4\ns_cbranch_scc1 {lab}_w\n{lab}:")
        if DBGST:
            lab = f"L_DB{len(a.l)}"
            a(f"s_cmp_lg_u32 s2, {DBGST-1}\ns_cbranch_scc1 {lab}\ns_cmp_lg_u32 s27, 0\ns_cbranch_scc1 {lab}")
            a("s_load_dwordx2 s[4:5], s[0:1], 80\nv_mov_b32 v249, 0")
            for i in range(1, 16):
                if i != 9: a(f"v_sub_u32 v{232+i}, v{232+i}, v232")
            a("s_waitcnt lgkmcnt(0)")
            for i in range(4): a(f"global_store_dwordx4 v249, {vr(232+4*i,4)}, s[4:5] offset:{16*i}")
            a(f"{lab}:")
    a("s_endpgm")

def umax_reduce64(a, v, t):
    for pat in ("quad_perm:[1,0,3,2]", "quad_perm:[2,3,0,1]", "row_half_mirror", "row_mirror"):
        a(f"s_nop 1\nv_max_u32_dpp v{v}, v{v}, v{v} {pat} row_mask:0xf bank_mask:0xf")
    for sw in ("v_permlane16_swap_b32", "v_permlane32_swap_b32"):
        a(f"v_mov_b32 v{t}, v{v}\ns_nop 1\n{sw} v{t}, v{v}\ns_nop 1\nv_max_u32 v{v}, v{v}, v{t}")

def gen(a):
    name = NAME + "_kernel"
    a.l.append(f".globl {name}\n.p2align 8\n.type {name},@function\n{name}:")
    if STAMP:
        a("s_memrealtime s[80:81]")
        for i in range(NST): a(f"s_mov_b32 s{86+i}, 0")
    a("""
s_cmp_ge_u32 s2, 256
s_cbranch_scc1 L_EXIT
s_load_dwordx4 s[4:7], s[0:1], 0
s_load_dwordx2 s[24:25], s[0:1], 88
s_load_dwordx2 s[8:9], s[0:1], 16
s_load_dwordx8 s[12:19], s[0:1], 32
s_load_dwordx4 s[20:23], s[0:1], 64
v_lshrrev_b32 v1, 6, v0
v_and_b32 v2, 63, v0
s_and_b32 s28, s2, 7
v_readfirstlane_b32 s27, v1
s_lshr_b32 s29, s2, 3
s_lshr_b32 s48, s28, 1
s_lshl_b32 s48, s48, 3
s_lshr_b32 s31, s29, 2
s_add_u32 s48, s48, s31
s_and_b32 s30, s29, 3
s_and_b32 s49, s28, 1
s_lshl_b32 s49, s49, 2
s_add_u32 s49, s49, s30
s_lshl_b32 s50, s30, 1
s_add_u32 s50, s50, s31
s_and_b32 s50, s50, 7
v_lshlrev_b32 v3, 4, v2
s_cmp_lt_u32 s27, 4
s_cbranch_scc1 P1_COMPUTE
""")
    a("""
s_sub_u32 s51, s27, 4
s_lshl_b32 s57, s48, 16
s_sub_u32 s58, s51, 1
s_lshl_b32 s58, s58, 10
s_lshl_b32 s59, s49, 7
s_add_u32 s58, s58, s59
s_cmp_eq_u32 s51, 0
s_movk_i32 s52, 3072
s_cmovk_i32 s52, 1024
s_cselect_b32 s53, 3, 0
s_cselect_b32 s54, 0, 4
s_cselect_b32 s55, 64, 0
s_mov_b32 s56, 0x30000
s_cmovk_i32 s56, 128
s_mov_b32 s38, 0x180000
s_cmov_b32 s38, 0x200000
s_cselect_b32 s57, s57, s58
s_mov_b32 s39, 0x00020000
v_lshrrev_b32 v4, 3, v2
v_and_b32 v5, 7, v2
v_lshrrev_b32 v6, 1, v4
v_and_b32 v6, s53, v6
v_lshlrev_b32 v7, 1, v4
v_and_b32 v7, s54, v7
v_xor_b32 v5, v5, v6
v_xor_b32 v5, v5, v7
v_lshlrev_b32 v5, 4, v5
v_mul_lo_u32 v4, v4, s52
v_add3_u32 v8, v4, v5, s57
v_xor_b32 v9, s55, v8
s_lshl_b32 s60, s52, 3
s_sub_u32 s60, s60, 1024
s_lshl_b32 s61, s51, 13
s_mov_b32 s62, 0
s_cmp_eq_u32 s51, 0
s_waitcnt lgkmcnt(0)
s_cselect_b32 s36, s4, s6
s_cselect_b32 s37, s5, s7
P1_LD_LOOP:
s_cmp_lt_u32 s62, 3
s_cbranch_scc1 P1_LD_ISSUE
s_waitcnt vmcnt(16)
s_barrier
P1_LD_ISSUE:
s_add_u32 s63, s62, s50
s_and_b32 s63, s63, 7
s_and_b32 s64, s62, 3
s_lshl_b32 s64, s64, 15
s_add_u32 m0, s64, s61
s_mul_i32 s63, s63, s56
""")
    for i in range(8):
        if i == 4: a("s_add_u32 m0, m0, 4096\ns_add_u32 s63, s63, 4096")
        a(f"buffer_load_dwordx4 v{8+(i&1)}, s[36:39], s63 offen offset:{(i%4)*1024} lds")
        if i != 7: a("s_add_u32 s63, s63, s60")
    a(f"""
s_add_u32 s62, s62, 1
s_cmp_lt_u32 s62, 8
s_cbranch_scc1 P1_LD_LOOP
s_mov_b32 s65, {WS_E:#x}
s_load_dword s26, s[24:25], s65
""")
    srd(a, 32, 24, WS_SIZE)
    a("""
s_waitcnt vmcnt(16)
s_barrier
s_waitcnt vmcnt(8)
s_barrier
s_waitcnt vmcnt(0) lgkmcnt(0)
s_barrier
s_mul_i32 s26, s26, 0x9e3779b1
s_add_u32 s26, s26, 0x7f4a7c15
s_cmp_lg_u32 s51, 1
s_cbranch_scc1 P1_DONE
""")
    X = 16; WR = 48; WGT = 52; P = 56
    a("P1_RG:")
    srd(a, 36, 4, 0x200000)
    srd(a, 40, 12, 1024)
    srd(a, 44, 20, 1024)
    a("""
s_lshl_b32 s52, s48, 3
s_add_u32 s52, s52, s49
s_lshl_b32 s53, s52, 13
s_add_u32 s54, s53, 4096
""")
    a(f"buffer_load_dwordx4 {vr(WR,4)}, v3, s[40:43], 0 offen")
    a(f"buffer_load_dwordx4 {vr(WGT,4)}, v3, s[44:47], 0 offen")
    for i in range(8):
        a(f"buffer_load_dwordx4 {vr(X+4*i,4)}, v3, s[36:39], s{53 if i < 4 else 54} offen offset:{(i%4)*1024}")
    for i in range(8): a(f"v_mov_b64 {vr(P+2*i,2)}, 0")
    a(f"""
s_cmp_lg_u32 s2, 0
s_cbranch_scc1 P1_RG_NOZ
s_mov_b32 s55, {WS_Y:#x}
buffer_store_dwordx4 {vr(P,4)}, v3, s[32:35], s55 offen sc1
buffer_store_dwordx4 {vr(P,4)}, v3, s[32:35], s55 offen offset:1024 sc1
P1_RG_NOZ:
s_waitcnt vmcnt(0)
""")
    for k in range(4):
        for i in range(8):
            a(f"v_dot2c_f32_bf16 v{P+i}, v{X+4*i+k}, v{WR+k}")
            a(f"v_dot2c_f32_bf16 v{P+8+i}, v{X+4*i+k}, v{WGT+k}")
    a("s_nop 2")
    for i in range(8): a(f"v_permlane32_swap_b32 v{P+i}, v{P+8+i}")
    a("s_nop 1")
    for i in range(8): a(f"v_add_f32 v{P+i}, v{P+i}, v{P+8+i}")
    a("s_nop 1")
    for i in range(4): a(f"v_permlane16_swap_b32 v{P+i}, v{P+4+i}")
    a("s_nop 1")
    for i in range(4): a(f"v_add_f32 v{P+i}, v{P+i}, v{P+4+i}")
    for pat in ("row_ror:8", "row_ror:4", "row_ror:2", "row_ror:1"):
        a("s_nop 1")
        for i in range(4): a(f"v_add_f32_dpp v{P+i}, v{P+i}, v{P+i} {pat} row_mask:0xf bank_mask:0xf")
    a(f"""
v_and_b32 v4, 1, v2
v_cmp_eq_u32 vcc, 0, v4
v_and_b32 v4, 2, v2
v_cmp_eq_u32 s[56:57], 0, v4
v_cndmask_b32 v{P}, v{P+1}, v{P}, vcc
v_cndmask_b32 v{P+2}, v{P+3}, v{P+2}, vcc
v_cndmask_b32 v{P}, v{P+2}, v{P}, s[56:57]
v_cvt_pk_bf16_f32 v{P}, v{P}, v{P}
v_and_b32 v{P}, 0xffff0000, v{P}
v_mul_f32 v5, {f32bits(-LOG2E):#x}, v{P}
v_exp_f32 v5, v5
v_ashrrev_i32 v6, 31, v{P}
v_or_b32 v6, 0x80000000, v6
v_add_f32 v5, 1.0, v5
v_rcp_f32 v5, v5
v_xor_b32 v6, v{P}, v6
v_and_b32 v6, 0xffff0000, v6
v_and_b32 v4, 3, v2
v_bfe_u32 v7, v2, 4, 1
v_lshl_add_u32 v4, v7, 2, v4
s_lshl_b32 s53, s52, 3
v_add_u32 v4, s53, v4
v_sub_u32 v7, 0x7ff, v4
v_or_b32 v6, v6, v7
v_cvt_pk_bf16_f32 v5, v5, v5
v_and_b32 v5, 0xffff0000, v5
v_lshlrev_b32 v4, 2, v4
s_mov_b32 s53, {WS_G:#x}
s_mov_b32 exec_lo, 0
buffer_store_dword v5, v4, s[32:35], s53 offen sc1
v_mov_b32 v6, 0
s_mov_b32 exec_lo, -1
""")
    umax_reduce64(a, 6, 7)
    a(f"""
v_mov_b32 v7, s26
s_lshl_b32 s53, s52, 3
s_add_u32 s53, s53, {WS_KG:#x}
v_mov_b32 v4, 0
s_waitcnt vmcnt(0)
s_mov_b64 exec, 1
buffer_store_dwordx2 v[6:7], v4, s[32:35], s53 offen sc1
s_mov_b64 exec, -1
s_branch P1_DONE
""")
    AQ, AK, AV, FR = 64, 80, 96, 128
    a(f"""
P1_COMPUTE:
s_and_b32 s51, s27, 1
s_lshr_b32 s52, s27, 1
v_lshrrev_b32 v4, 5, v2
v_and_b32 v5, 31, v2
v_bfe_u32 v6, v2, 1, 3
v_xor_b32 v6, v6, v4
v_lshlrev_b32 v6, 4, v6
s_lshl_b32 s53, s51, 12
v_lshl_add_u32 v6, v5, 7, v6
v_add_u32 v10, s53, v6
v_xor_b32 v11, 32, v10
v_xor_b32 v12, 64, v10
v_xor_b32 v13, 0x60, v10
v_bfe_u32 v6, v2, 2, 2
v_lshl_add_u32 v7, v4, 3, v6
v_lshlrev_b32 v7, 7, v7
v_lshrrev_b32 v6, 1, v6
v_xor_b32 v6, s52, v6
v_lshl_add_u32 v7, v6, 6, v7
v_bfe_u32 v6, v2, 4, 1
v_lshl_add_u32 v7, v6, 5, v7
v_and_b32 v6, 3, v2
v_lshl_add_u32 v7, v6, 3, v7
v_add_u32 v14, 0x2000, v7
""")
    for i in range(24): a(f"v_mov_b64 {vr(AQ+2*i,2)}, 0")
    for i in range(16): a(f"v_mov_b64 {vr(FR+32+2*i,2)}, 0")
    a(f"""
s_mov_b32 s65, {WS_E:#x}
s_mov_b32 s62, 0
v_mov_b32 v21, 0
s_waitcnt lgkmcnt(0)
""")
    srd(a, 32, 24, WS_SIZE)
    a("buffer_load_dword v21, v21, s[32:35], s65 offen")
    stamp(a, 0)
    a("""
P1_LOOP:
s_and_b32 s64, s62, 3
s_lshl_b32 s64, s64, 15
v_add_u32 v16, s64, v10
v_add_u32 v20, s64, v14
v_add_u32 v17, s64, v11
v_add_u32 v18, s64, v12
v_add_u32 v19, s64, v13
s_barrier
""")
    if STAMP:
        a("s_cmp_lg_u32 s62, 0\ns_cbranch_scc1 P1_ST1"); stamp(a, 1); a("P1_ST1:")
    def reads(s):
        b = FR + 16*s
        r = [f"ds_read_b128 {vr(b,4)}, v{16+s}"]
        for sec in range(3):
            for jj in range(2):
                r.append(f"ds_read_b64_tr_b16 {vr(b+4+4*sec+2*jj,2)}, v20 offset:{sec*8192+s*2048+jj*512}")
        return r
    def mfmas(s):
        b = FR + 16*s
        X_ = vr(b,4); WQ = vr(b+4,4); WK = vr(b+8,4); WV = vr(b+12,4)
        return [f"v_mfma_f32_32x32x16_bf16 {vr(AK,16)}, {WK}, {X_}, {vr(AK,16)}",
                f"v_mfma_f32_32x32x16_bf16 {vr(AV,16)}, {X_}, {WV}, {vr(AV,16)}",
                f"v_mfma_f32_32x32x16_bf16 {vr(AQ,16)}, {WQ}, {X_}, {vr(AQ,16)}"]
    def inter(r, m):
        for i in range(3):
            a(m[i])
            for x in r[i*2:(i+1)*2 + (1 if i == 2 else 0)]: a(x)
    inter(reads(0), mfmas(2)); inter(reads(1), mfmas(3))
    a("s_waitcnt lgkmcnt(7)"); inter(reads(2), mfmas(0))
    a("s_waitcnt lgkmcnt(7)"); inter(reads(3), mfmas(1))
    a("""
s_add_u32 s62, s62, 1
s_cmp_lt_u32 s62, 8
s_waitcnt lgkmcnt(0)
s_cbranch_scc1 P1_LOOP
""")
    for x in mfmas(2) + mfmas(3): a(x)
    a(f"""
s_waitcnt vmcnt(0)
v_readfirstlane_b32 s26, v21
s_lshl_b32 s53, s48, 1
s_add_u32 s53, s53, s51
s_lshl_b32 s54, s49, 2
s_lshl_b32 s55, s52, 1
s_add_u32 s54, s54, s55
s_lshl_b32 s56, s53, 10
s_lshl_b32 s57, s54, 16
s_add_u32 s57, s57, s56
s_add_u32 s58, s57, 0x10000
s_lshl_b32 s59, s57, 1
s_add_u32 s59, s59, {WS_KV:#x}
s_add_u32 s60, s59, 0x20000
s_mov_b32 s64, {f32bits(QSCALE):#x}
s_mov_b32 s65, {f32bits(QSCALE):#x}
s_mul_i32 s26, s26, 0x9e3779b1
s_add_u32 s26, s26, 0x7f4a7c15
v_and_b32 v6, 0x33, v2
v_and_b32 v7, 4, v2
v_lshl_or_b32 v6, v7, 1, v6
v_and_b32 v7, 8, v2
v_lshrrev_b32 v7, 1, v7
v_or_b32 v6, v6, v7
v_lshlrev_b32 v22, 4, v6
v_and_b32 v6, 0x2f, v2
v_lshlrev_b32 v6, 4, v6
v_bfe_u32 v7, v2, 4, 1
v_lshl_add_u32 v23, v7, 17, v6
""")
    for i in range(8): a(f"v_cvt_pk_bf16_f32 v{136+i}, v{AK+2*i}, v{AK+1+2*i}")
    a(f"buffer_store_dwordx4 v[136:139], v22, s[32:35], s59 offen sc1")
    a(f"buffer_store_dwordx4 v[140:143], v22, s[32:35], s60 offen sc1")
    for i in range(8): a(f"v_cvt_pk_bf16_f32 v{144+i}, v{AV+2*i}, v{AV+1+2*i}")
    a(f"buffer_store_dwordx4 v[144:147], v23, s[32:35], s59 offen offset:1024 sc1")
    a(f"buffer_store_dwordx4 v[148:151], v23, s[32:35], s59 offen offset:1280 sc1")
    for i in range(8): a(f"v_pk_mul_f32 {vr(AQ+2*i,2)}, {vr(AQ+2*i,2)}, s[64:65]")
    for i in range(8): a(f"v_cvt_pk_bf16_f32 v{128+i}, v{AQ+2*i}, v{AQ+1+2*i}")
    a(f"buffer_store_dwordx4 v[128:131], v3, s[32:35], s57 offen sc1")
    a(f"buffer_store_dwordx4 v[132:135], v3, s[32:35], s58 offen sc1")
    stamp(a, 2)
    a(f"""
s_lshr_b32 s54, s54, 1
s_lshl_b32 s54, s54, 6
s_add_u32 s54, s54, s53
s_lshl_b32 s54, s54, 2
s_add_u32 s54, s54, {WS_F1:#x}
v_mov_b32 v6, s26
v_mov_b32 v7, 0
s_waitcnt vmcnt(0)
s_mov_b64 exec, 1
buffer_store_dword v6, v7, s[32:35], s54 offen sc1
s_mov_b64 exec, -1
""")
    stamp(a, 3)
    Q0, Q1, S0, S1, O0, O1, M0, M1, FA, FB, T = 4, 8, 16, 32, 48, 64, 80, 96, 112, 124, 136
    FW = 3
    a(f"""
P1_DONE:
s_lshl_b32 s48, s28, 2
s_add_u32 s48, s48, s30
s_and_b32 s49, s27, 3
s_lshr_b32 s50, s27, 2
s_lshl_b32 s51, s31, 3
s_lshl_b32 s52, s49, 1
s_add_u32 s51, s51, s52
s_lshl_b32 s52, s48, 16
s_lshl_b32 s53, s51, 10
s_add_u32 s52, s52, s53
s_lshl_b32 s54, s48, 17
s_add_u32 s54, s54, {WS_KV:#x}
s_lshl_b32 s55, s50, 16
s_lshl_b32 s56, s49, 10
s_add_u32 s56, s56, s55
s_lshl_b32 s57, s31, 14
s_add_u32 s57, s57, s56
s_and_b32 s57, s57, 0x1ffff
s_mov_b32 m0, s56
v_add_u32 v13, s55, v3
v_mov_b32 v12, 0xdddddddd
v_and_b32 v14, 27, v2
v_cmp_eq_u32 vcc, 16, v14
v_mov_b32 v15, 0x3f803f80
s_mov_b32 s58, 0xffff
s_mov_b32 s59, 0xffff
v_cndmask_b32 v14, 0, v15, vcc
v_mov_b32 v15, v14
""")
    for F in (FA, FB):
        for i in range(4): a(f"v_mov_b64 {vr(F+4+2*i,2)}, v[14:15]")
    for i in range(16): a(f"v_mov_b64 {vr(O0+2*i,2)}, 0")
    a(f"""
s_min_u32 s60, s29, 27
s_mul_i32 s61, s28, 28
s_add_u32 s60, s60, s61
v_mul_u32_u24 v{T}, 3584, v2
s_mul_i32 s61, s27, {64*3584}
s_lshl_b32 s62, s60, 4
s_add_u32 s61, s61, s62
s_lshl_b32 s62, s60, 13
s_lshl_b32 s63, s27, 10
s_add_u32 s62, s62, s63
""")
    srd(a, 36, 14, 512*3584); srd(a, 40, 16, 512*3584); srd(a, 44, 18, 512*3584)
    a(f"""
s_cmp_lg_u32 s27, 0
s_cbranch_scc1 P1_POLLED
s_lshr_b32 s64, s48, 1
s_lshl_b32 s64, s64, 8
s_add_u32 s64, s64, {WS_F1:#x}
v_lshlrev_b32 v4, 2, v2
s_mov_b32 s65, {POLL_MAX}
P1_POLL:
s_sleep {SL1}
buffer_load_dword v5, v4, s[32:35], s64 offen sc1
s_sub_u32 s65, s65, 1
s_cbranch_scc1 P1_POLLED
s_waitcnt vmcnt(0)
v_cmp_ne_u32 vcc, s26, v5
s_cbranch_vccnz P1_POLL
P1_POLLED:
s_barrier
""")
    stamp(a, 4)
    def dma_group():
        return ["s_add_u32 s64, s54, s57", "s_add_u32 s57, s57, 4096", "s_and_b32 s57, s57, 0x1ffff",
                "buffer_load_dwordx4 v3, s[32:35], s64 offen sc1 lds", "s_add_u32 m0, m0, 4096"]
    a(f"buffer_load_dwordx4 {vr(Q0,4)}, v3, s[32:35], s52 offen sc1")
    a(f"buffer_load_dwordx4 {vr(Q1,4)}, v3, s[32:35], s52 offen offset:1024 sc1")
    for g in range(3):
        for x in dma_group(): a(x)
    a(f"""
s_waitcnt vmcnt(0)
s_barrier
ds_read_b128 {vr(FB,4)}, v3
ds_read_b128 {vr(FA,4)}, v13
s_mov_b64 exec, s[58:59]
ds_read_b128 {vr(FA+4,4)}, v13 offset:1024
ds_read_b128 {vr(FA+8,4)}, v13 offset:1280
s_mov_b64 exec, -1
s_waitcnt lgkmcnt(3)
v_mfma_f32_32x32x16_bf16 {vr(S0,16)}, {vr(FB,4)}, {vr(Q0,4)}, 0
v_mfma_f32_32x32x16_bf16 {vr(S1,16)}, {vr(FB,4)}, {vr(Q1,4)}, 0
s_nop 10
""")
    stamp(a, 5)
    for S, M, t in ((S0, M0, T+1), (S1, M1, T+3)):
        a(f"v_max3_f32 v{t}, v{S}, v{S+1}, v{S+2}")
        for i in range(6): a(f"v_max3_f32 v{t}, v{t}, v{S+3+2*i}, v{S+4+2*i}")
        a(f"v_max_f32 v{t}, v{t}, v{S+15}\nv_mov_b32 v{t+1}, v{t}\ns_nop 1\nv_permlane32_swap_b32 v{t+1}, v{t}\ns_nop 1")
        a(f"v_max_f32 v{t}, v{t}, v{t+1}\nv_mul_f32 v{M}, -1.0, v{t}\nv_mul_f32 v{M+1}, -1.0, v{t}")
        for i in range(1, 8): a(f"v_mov_b64 {vr(M+2*i,2)}, {vr(M,2)}")
        if S == S0:
            a(f"s_nop 0\ns_waitcnt lgkmcnt(0)\nv_mfma_f32_32x32x16_bf16 {vr(S0,16)}, {vr(FA,4)}, {vr(Q0,4)}, {vr(M0,16)}")
    def smf(o, v, p): return f"v_smfmac_f32_32x32x32_bf16 {vr(o,16)}, {vr(v,4)}, {vr(p,8)}, v12"
    def qk(d, k, q, mn): return f"v_mfma_f32_32x32x16_bf16 {vr(d,16)}, {vr(k,4)}, {vr(q,4)}, {vr(mn,16)}"
    def iteration(first, peeled, extras):
        ex = list(extras)
        for kt in range(4):
            F = FA if kt % 2 == 0 else FB
            G = FB if kt % 2 == 0 else FA
            for q in range(2):
                cur, nxt = (S0, S1) if q == 0 else (S1, S0)
                Oc, On = (O0, O1) if q == 0 else (O1, O0)
                for i in range(16):
                    if i == 2:
                        if not (first and kt == 0 and q == 0):
                            a(smf(On, (G if q == 0 else F) + 8, nxt + 8))
                        if q == 0:
                            o = (kt+1)*2048
                            a(f"ds_read_b128 {vr(G,4)}, v13 offset:{o}")
                            a("s_mov_b64 exec, s[58:59]")
                            a(f"ds_read_b128 {vr(G+4,4)}, v13 offset:{o+1024}")
                            a(f"ds_read_b128 {vr(G+8,4)}, v13 offset:{o+1280}")
                            a("s_mov_b64 exec, -1")
                    if i == PQ:
                        if q == 1: a("s_waitcnt lgkmcnt(0)")
                        a(qk(nxt, F if q == 0 else G, Q1 if q == 0 else Q0, M1 if q == 0 else M0))
                    if i == PS:
                        a(smf(Oc, F + 4, cur))
                        if kt == 3 and q == 1:
                            a("v_add_u32 v13, 0x2000, v13")
                            if not peeled: a("s_add_u32 s66, s66, 1\ns_cmp_lg_u32 s66, s67")
                    if i in (8, 14) and ex:
                        for x in ex.pop(0): a(x)
                    a(f"v_exp_f32 v{cur+i}, v{cur+i}")
        assert not ex
    ffn_dma = [[f"s_add_u32 m0, s63, {L_FG:#x}", "s_nop 0", f"buffer_load_dwordx4 v{T}, s[36:39], s61 offen lds"],
               [f"s_add_u32 m0, s63, {L_FU:#x}", "s_nop 0", f"buffer_load_dwordx4 v{T}, s[40:43], s61 offen lds"],
               [f"s_add_u32 m0, s63, {L_FD:#x}", "s_nop 0", f"buffer_load_dwordx4 v3, s[44:47], s62 offen lds"]]
    iteration(True, True, [dma_group() for _ in range(6)])
    a(f"""
s_waitcnt vmcnt(0)
s_barrier
""")
    stamp(a, 6)
    stampc(a, 7)
    iteration(False, True, [dma_group() for _ in range(7)] + [[]]*3 + sum([[x, []] for x in ffn_dma], []))
    KG = T+8
    a(f"""
s_mov_b32 s66, 2
s_mov_b32 s67, 4
s_cmp_lg_u32 s27, {FW}
s_cbranch_scc1 P2_LOOP
s_mov_b32 s67, 3
s_mov_b32 s68, {POLL_MAX}
P2_KEYLD:
s_mov_b32 s64, {WS_KG:#x}
buffer_load_dwordx4 {vr(KG,4)}, v3, s[32:35], s64 offen sc1
buffer_load_dwordx4 {vr(KG+4,4)}, v3, s[32:35], s64 offen offset:1024 sc1
s_cmp_eq_u32 s66, 3
s_cbranch_scc1 P2_KEYS
P2_LOOP:
""")
    iteration(False, False, [])
    a(f"""
s_cbranch_scc1 P2_LOOP
s_cmp_eq_u32 s66, 8
s_cbranch_scc1 P2_FIN
s_cmp_eq_u32 s66, 4
s_cbranch_scc1 P2_MID
P2_KEYS:
s_waitcnt vmcnt(0)
v_cmp_ne_u32 vcc, s26, v{KG+1}
v_cmp_ne_u32 s[64:65], s26, v{KG+3}
s_or_b64 vcc, vcc, s[64:65]
v_cmp_ne_u32 s[64:65], s26, v{KG+5}
s_or_b64 vcc, vcc, s[64:65]
v_cmp_ne_u32 s[64:65], s26, v{KG+7}
s_or_b64 vcc, vcc, s[64:65]
s_sub_u32 s68, s68, 1
s_cbranch_scc1 P2_KEYOK
s_cbranch_vccnz P2_KEYLD
P2_KEYOK:
v_max3_u32 v{KG}, v{KG}, v{KG+2}, v{KG+4}
v_max_u32 v{KG}, v{KG}, v{KG+6}
""")
    umax_reduce64(a, KG, KG+1)
    srd(a, 36, 4, 0x200000)
    a(f"""
v_readfirstlane_b32 s64, v{KG}
v_mov_b32 v{KG+1}, {L_MISC:#x}
s_mov_b32 s67, 4
ds_write_b32 v{KG+1}, v{KG}
s_and_b32 s64, s64, 0x7ff
s_sub_u32 s64, 0x7ff, s64
s_mov_b32 m0, {L_XS:#x}
s_lshl_b32 s64, s64, 10
buffer_load_dwordx4 v3, s[36:39], s64 offen lds
s_branch P2_LOOP
P2_MID:
s_mov_b32 s67, 8
""")
    srd(a, 36, 8, 0x80000)
    a(f"""
s_add_u32 s69, s30, s31
s_and_b32 s69, s69, 3
v_lshrrev_b32 v{T+1}, 3, v2
v_and_b32 v{T+2}, 7, v2
v_lshlrev_b32 v{T+3}, 1, v{T+1}
v_and_b32 v{T+3}, 4, v{T+3}
v_xor_b32 v{T+2}, v{T+2}, v{T+3}
v_lshlrev_b32 v{T+2}, 4, v{T+2}
v_lshl_add_u32 v{T+1}, v{T+1}, 10, v{T+2}
s_lshl_b32 s70, s31, 7
s_lshl_b32 s71, s27, 13
s_add_u32 s70, s70, s71
s_waitcnt vmcnt(0) lgkmcnt(0)
s_barrier
""")
    for n in range(3):
        a(f"""s_add_u32 s64, s69, {n}
s_and_b32 s64, s64, 3
s_lshl_b32 s64, s64, 17
s_add_u32 m0, s63, {WO_SLOTS[n]:#x}
s_add_u32 s64, s64, s70
buffer_load_dwordx4 v{T+1}, s[36:39], s64 offen lds
s_add_u32 m0, s63, {WO_SLOTS[n]+0x2000:#x}
s_add_u32 s64, s64, 0x10000
buffer_load_dwordx4 v{T+1}, s[36:39], s64 offen lds""")
    a(f"""
s_cmp_lg_u32 s27, {FW}
s_cbranch_scc1 P2_LOOP
s_cmp_gt_u32 s29, 27
s_cbranch_scc1 P2_LOOP
""")
    A = T+4; R = T+8; D = T+40; H = T+44; YA = T+56
    a(f"""
v_lshrrev_b32 v{A}, 4, v2
v_lshlrev_b32 v{A+1}, 4, v{A}
v_add_u32 v{A+1}, {L_XS:#x}, v{A+1}
v_bfe_u32 v{A+2}, v2, 2, 2
v_lshl_add_u32 v{A}, v{A}, 3, v{A+2}
v_lshlrev_b32 v{A}, 4, v{A}
v_bfe_u32 v{A+3}, v2, 1, 1
v_lshl_add_u32 v{A}, v{A+3}, 13, v{A}
v_and_b32 v{A+3}, 1, v2
v_lshl_add_u32 v{A}, v{A+3}, 3, v{A}
v_add_u32 v{A}, {L_FG:#x}, v{A}
v_bfe_u32 v{A+3}, v2, 4, 1
v_lshl_add_u32 v{A+2}, v{A+3}, 2, v{A+2}
v_lshlrev_b32 v{A+2}, 10, v{A+2}
v_and_b32 v{A+3}, 3, v2
v_lshl_add_u32 v{A+2}, v{A+3}, 3, v{A+2}
v_add_u32 v{A+2}, {L_FD:#x}, v{A+2}
""")
    for blk in range(4):
        for s in range(4):
            ks = blk*4+s; b = R + 8*s
            a(f"ds_read_b64_tr_b16 {vr(b,2)}, v{A} offset:{ks*512}")
            a(f"ds_read_b64_tr_b16 {vr(b+2,2)}, v{A} offset:{ks*512+64}")
            a(f"ds_read_b128 {vr(b+4,4)}, v{A+1} offset:{ks*64}")
        for s in range(4):
            ks = blk*4+s; b = R + 8*s
            a(f"s_waitcnt lgkmcnt({9-3*s})")
            a(f"v_mfma_f32_16x16x32_bf16 {vr(D,4)}, {vr(b,4)}, {vr(b+4,4)}, {vr(D,4) if ks else 0}")
    for q in range(16): a(f"ds_read_b64_tr_b16 {vr(R+2*q,2)}, v{A+2} offset:{q*32}")
    for r in range(4): a(f"v_mov_b32 v{H+r}, v{D+r}")
    a("s_nop 1")
    for r in range(4): a(f"v_permlane32_swap_b32 v{H+r}, v{D+r}")
    a("s_nop 1")
    for r in range(4): a(f"v_mul_f32 v{H+4+r}, {f32bits(-LOG2E):#x}, v{H+r}")
    for r in range(4): a(f"v_exp_f32 v{H+4+r}, v{H+4+r}")
    for r in range(4): a(f"v_mul_f32 v{H+r}, v{H+r}, v{D+r}")
    for r in range(4): a(f"v_add_f32 v{H+4+r}, 1.0, v{H+4+r}")
    for r in range(4): a(f"v_rcp_f32 v{H+4+r}, v{H+4+r}")
    a("s_nop 0")
    for r in range(4): a(f"v_mul_f32 v{H+r}, v{H+r}, v{H+4+r}")
    a(f"v_cvt_pk_bf16_f32 v{D}, v{H}, v{H+1}\nv_cvt_pk_bf16_f32 v{D+1}, v{H+2}, v{H+3}")
    for j in range(4): a(f"v_mov_b64 {vr(H+2*j,2)}, 0")
    a("s_mov_b32 exec_hi, 0")
    for j in range(4):
        a(f"s_mov_b32 exec_lo, {(0xf << (4*j)) * 0x10001:#x}\nv_mov_b64 {vr(H+2*j,2)}, {vr(D,2)}")
    a("s_mov_b64 exec, -1\ns_nop 1")
    for half in range(2):
        if half:
            for q in range(16): a(f"ds_read_b64_tr_b16 {vr(R+2*q,2)}, v{A+2} offset:{512+q*32}")
        a("s_waitcnt lgkmcnt(0)")
        for j in range(4):
            for Qn in range(4):
                acc = vr(YA + 4*(half*4+Qn), 4)
                a(f"v_mfma_f32_16x16x16_bf16 {acc}, {vr(H+2*j,2)}, {vr(R+2*(Qn*4+j),2)}, {acc if j else 0}")
    a(f"v_lshlrev_b32 v{A}, 2, v2\ns_mov_b32 s64, {WS_Y:#x}\ns_nop 7")
    for Qn in range(8):
        a(f"buffer_atomic_add_f32 v{YA+4*Qn}, v{A}, s[32:35], s64 offen offset:{Qn*256}")
    a("s_branch P2_LOOP")
    a(f"""
P2_FIN:
s_nop 1
{smf(O1, FB+8, S1+8)}
""")
    stampc(a, 7)
    stamp(a, 8)
    a(f"""
s_lshl_b32 s64, s27, 11
s_xor_b32 s65, s64, 0x2000
v_add_u32 v14, s64, v3
v_add_u32 v15, s65, v3
s_lshr_b32 s64, s64, 3
s_lshr_b32 s65, s65, 3
v_lshlrev_b32 v{T+2}, 2, v2
v_add_u32 v{T+3}, s65, v{T+2}
v_add_u32 v{T+2}, s64, v{T+2}
v_add_u32 v14, {L_OX:#x}, v14
v_add_u32 v15, {L_OX:#x}, v15
v_add_u32 v{T+2}, {L_LS:#x}, v{T+2}
v_add_u32 v{T+3}, {L_LS:#x}, v{T+3}
s_cmp_eq_u32 s50, 0
s_cbranch_scc1 P2_X0
ds_write_b128 v14, {vr(O0,4)}
ds_write_b128 v14, {vr(O0+4,4)} offset:1024
ds_write_b32 v{T+2}, v{O0+8}
""")
    for i in range(5): a(f"v_mov_b64 {vr(O0+2*i,2)}, {vr(O1+2*i,2)}")
    for i in range(2): a(f"v_mov_b64 {vr(Q0+2*i,2)}, {vr(Q1+2*i,2)}")
    a(f"""
s_branch P2_X1
P2_X0:
ds_write_b128 v14, {vr(O1,4)}
ds_write_b128 v14, {vr(O1+4,4)} offset:1024
ds_write_b32 v{T+2}, v{O1+8}
P2_X1:
s_add_u32 s51, s51, s50
s_lshl_b32 s52, s51, 5
s_add_u32 s52, s52, s48
s_lshl_b32 s53, s52, 10
s_add_u32 s53, s53, {WS_OF:#x}
s_lshl_b32 s52, s52, 2
s_add_u32 s52, s52, {WS_F2:#x}
s_waitcnt lgkmcnt(0)
s_barrier
ds_read_b128 {vr(S0,4)}, v15
ds_read_b128 {vr(S0+4,4)}, v15 offset:1024
ds_read_b32 v{S0+8}, v{T+3}
s_mov_b32 s68, 0
s_waitcnt lgkmcnt(0)
v_add_f32 v{O0+8}, v{O0+8}, v{S0+8}
""")
    for i in range(4): a(f"v_pk_add_f32 {vr(O0+2*i,2)}, {vr(O0+2*i,2)}, {vr(S0+2*i,2)}")
    a(f"""
P2_NORM:
v_rcp_f32 v{T+2}, v{O0+8}
v_cmp_ngt_f32 vcc, {f32bits(2.0**40):#x}, v{O0+8}
""")
    for i in range(8): a(f"v_mul_f32 v{O0+i}, v{O0+i}, v{T+2}")
    a(f"""
v_add_f32 v{T+3}, |v{O0}|, |v{O0+1}|
v_add_f32 v{T+4}, |v{O0+2}|, |v{O0+3}|
v_add_f32 v{T+5}, |v{O0+4}|, |v{O0+5}|
v_add_f32 v{T+6}, |v{O0+6}|, |v{O0+7}|
v_add3_f32_PLACEHOLDER
""".replace("v_add3_f32_PLACEHOLDER", f"v_add_f32 v{T+3}, v{T+3}, v{T+4}\nv_add_f32 v{T+5}, v{T+5}, v{T+6}\nv_add_f32 v{T+3}, v{T+3}, v{T+5}"))
    a(f"s_mov_b64 s[64:65], vcc\nv_cmp_ngt_f32 vcc, 0x7f800000, v{T+3}")
    for i in range(4): a(f"v_cvt_pk_bf16_f32 v{S0+i}, v{O0+2*i}, v{O0+2*i+1}")
    a(f"""
s_or_b64 vcc, vcc, s[64:65]
s_cmp_lg_u32 s68, 0
s_cbranch_scc1 P2_STORE
s_cbranch_vccnz P2_FALLBACK
P2_STORE:
buffer_store_dwordx4 {vr(S0,4)}, v3, s[32:35], s53 offen sc1
v_mov_b32 v{T+2}, s26
v_mov_b32 v{T+3}, 0
s_lshl_b32 s64, s2, 2
s_add_u32 s64, s64, {WS_F3:#x}
s_cmp_lt_u32 s27, 4
s_cbranch_scc1 P3_COMPUTE
s_waitcnt vmcnt(0)
s_mov_b64 exec, 1
buffer_store_dword v{T+2}, v{T+3}, s[32:35], s52 offen sc1
s_mov_b64 exec, -1
""")
    stamp(a, 9)
    a(f"""
s_add_u32 s64, s69, 3
s_and_b32 s64, s64, 3
s_lshl_b32 s64, s64, 17
s_lshl_b32 s65, s31, 7
s_add_u32 s64, s64, s65
s_lshl_b32 s65, s49, 15
s_add_u32 s64, s64, s65
s_lshl_b32 s65, s49, 12
s_add_u32 m0, s65, {WO_SLOTS[3]:#x}
s_and_b32 s70, s49, 1
""")
    for i in range(4):
        a(f"buffer_load_dwordx4 v{T+1}, s[36:39], s64 offen offset:{i*1024} lds")
        if i < 3: a("s_add_u32 s64, s64, 7168")
    a(f"""
s_lshl_b32 s71, s48, 1
s_add_u32 s71, s71, s70
s_lshl_b32 s72, s71, 7
s_add_u32 s72, s72, {WS_F2:#x}
v_and_b32 v4, 31, v2
v_lshlrev_b32 v4, 2, v4
s_mov_b32 s68, {POLL_MAX}
P3_POLL:
s_sleep {SL2}
buffer_load_dword v5, v4, s[32:35], s72 offen sc1
s_sub_u32 s68, s68, 1
s_cbranch_scc1 P3_POLLED
s_waitcnt vmcnt(0)
v_cmp_ne_u32 vcc, s26, v5
s_cbranch_vccnz P3_POLL
P3_POLLED:
""")
    stamp(a, 10)
    a(f"""
s_lshl_b32 s71, s71, 15
s_lshr_b32 s72, s49, 1
s_lshl_b32 s72, s72, 12
s_add_u32 s71, s71, s72
s_add_u32 s71, s71, {WS_OF:#x}
s_lshl_b32 s70, s70, 13
s_add_u32 s70, s70, s72
""")
    for n in range(4):
        a(f"""s_add_u32 s64, s69, {n}
s_and_b32 s64, s64, 3
s_lshl_b32 s64, s64, 13
s_add_u32 m0, s70, {OF_SLOTS[n]:#x}
s_add_u32 s64, s64, s71""")
        for i in range(4): a(f"buffer_load_dwordx4 v3, s[32:35], s64 offen offset:{i*1024} sc1 lds")
    for n in range(4): a(f"s_waitcnt vmcnt({12-4*n})\ns_barrier")
    endpgm(a)
    ACC = 64; X = 80; Y = 88; FR = 16; T3 = 104
    tbl_wo = sum((WO_SLOTS[n] >> 14) << (4*n) for n in range(4))
    tbl_of = sum((OF_SLOTS[n] >> 14) << (4*n) for n in range(4))
    a(f"""
P3_COMPUTE:
s_and_b32 s70, s27, 1
s_lshr_b32 s71, s27, 1
v_lshrrev_b32 v4, 5, v2
v_and_b32 v5, 31, v2
s_lshl_b32 s72, s48, 6
s_lshl_b32 s73, s70, 5
s_add_u32 s72, s72, s73
v_add_u32 v12, s72, v5
s_lshl_b32 s73, s31, 6
s_lshl_b32 s74, s71, 5
s_add_u32 s73, s73, s74
v_lshl_add_u32 v13, v4, 4, s73
v_lshlrev_b32 v14, 10, v12
v_lshl_add_u32 v14, v13, 1, v14
v_lshlrev_b32 v15, 2, v12
v_lshlrev_b32 v13, 2, v13
v_mov_b32 v6, {L_MISC:#x}
ds_read_b32 v{T3}, v6
""")
    srd(a, 40, 4, 0x200000)
    srd(a, 44, 22, 0x200000)
    a(f"""
s_mov_b32 s74, {WS_G:#x}
s_waitcnt vmcnt(0)
s_mov_b64 exec, 1
buffer_store_dword v{T+2}, v{T+3}, s[32:35], s52 offen sc1
s_cmp_lg_u32 s27, {FW}
s_cbranch_scc1 P3_NOF3
buffer_store_dword v{T+2}, v{T+3}, s[32:35], s64 offen sc1
P3_NOF3:
s_mov_b64 exec, -1
""")
    stamp(a, 9)
    a(f"""
buffer_load_dword v{T3+1}, v15, s[32:35], s74 offen sc1
buffer_load_dwordx4 {vr(X,4)}, v14, s[40:43], 0 offen
buffer_load_dwordx4 {vr(X+4,4)}, v14, s[40:43], 0 offen offset:16
s_lshl_b32 s72, s70, 13
v_add_u32 v10, s72, v3
v_bfe_u32 v6, v2, 2, 2
v_lshl_add_u32 v7, v4, 2, v6
v_lshlrev_b32 v7, 7, v7
v_lshrrev_b32 v6, 1, v6
v_xor_b32 v6, s71, v6
v_lshl_add_u32 v7, v6, 6, v7
v_and_b32 v6, 1, v2
v_lshl_add_u32 v7, v6, 5, v7
v_bfe_u32 v6, v2, 4, 1
v_lshl_add_u32 v7, v6, 4, v7
v_bfe_u32 v6, v2, 1, 1
v_lshl_add_u32 v11, v6, 3, v7
""")
    for i in range(8): a(f"v_mov_b64 {vr(ACC+2*i,2)}, 0")
    a(f"""
s_waitcnt lgkmcnt(0)
v_and_b32 v{T3+2}, 0x7ff, v{T3}
v_sub_u32 v{T3+2}, 0x7ff, v{T3+2}
v_cmp_eq_u32 s[76:77], v{T3+2}, v12
v_and_b32 v{T3}, 0xffff0000, v{T3}
v_ashrrev_i32 v{T3+3}, 31, v{T3}
v_not_b32 v{T3+3}, v{T3+3}
v_or_b32 v{T3+3}, 0x80000000, v{T3+3}
v_xor_b32 v{T3}, v{T3}, v{T3+3}
v_and_b32 v{T3}, 0xffff0000, v{T3}
v_mul_f32 v{T3}, {f32bits(-LOG2E):#x}, v{T3}
v_exp_f32 v{T3}, v{T3}
s_waitcnt vmcnt(0)
v_sub_f32 v{T3+4}, 1.0, v{T3+1}
v_add_f32 v{T3}, 1.0, v{T3}
v_rcp_f32 v{T3}, v{T3}
""")
    B = 48
    for i in range(8):
        a(f"v_lshlrev_b32 v{B+2*i}, 16, v{X+i}\nv_and_b32 v{B+2*i+1}, 0xffff0000, v{X+i}")
    a(f"""
s_cmp_eq_u64 s[76:77], 0
s_cbranch_scc1 P3_NOSEL
s_mov_b32 s74, {WS_F3:#x}
s_mov_b32 s68, {POLL_MAX}
P3_POLL3:
s_sleep {SL2}
buffer_load_dwordx4 {vr(Y,4)}, v3, s[32:35], s74 offen sc1
s_sub_u32 s68, s68, 1
s_cbranch_scc1 P3_POLLED3
s_waitcnt vmcnt(0)
v_cmp_ne_u32 vcc, s26, v{Y}
v_cmp_ne_u32 s[64:65], s26, v{Y+1}
s_or_b64 vcc, vcc, s[64:65]
v_cmp_ne_u32 s[64:65], s26, v{Y+2}
s_or_b64 vcc, vcc, s[64:65]
v_cmp_ne_u32 s[64:65], s26, v{Y+3}
s_or_b64 vcc, vcc, s[64:65]
s_cbranch_vccnz P3_POLL3
P3_POLLED3:
s_mov_b32 s74, {WS_Y:#x}
s_mov_b64 exec, s[76:77]
""")
    for i in range(4): a(f"buffer_load_dwordx4 {vr(Y+4*i,4)}, v13, s[32:35], s74 offen offset:{16*i} sc1")
    a("s_waitcnt vmcnt(0)")
    for i in range(16): a(f"v_fmac_f32 v{B+i}, v{Y+i}, v{T3}")
    a("s_mov_b64 exec, -1\nP3_NOSEL:")
    for i in range(16): a(f"v_mul_f32 v{B+i}, v{B+i}, v{T3+4}")
    a(f"""
s_mov_b32 s72, {tbl_wo:#x}
s_mov_b32 s73, {tbl_of:#x}
P3_LOOP:
s_and_b32 s74, s72, 15
s_lshl_b32 s74, s74, 14
s_and_b32 s75, s73, 15
s_lshl_b32 s75, s75, 14
v_add_u32 v8, s75, v10
v_add_u32 v9, s74, v11
s_lshr_b32 s72, s72, 4
s_barrier
""")
    def reads3(hh):
        b = FR + 8*(hh % 4)
        a(f"ds_read_b128 {vr(b,4)}, v8 offset:{hh*1024}")
        a(f"ds_read_b64_tr_b16 {vr(b+4,2)}, v9 offset:{hh*2048}")
        a(f"ds_read_b64_tr_b16 {vr(b+6,2)}, v9 offset:{hh*2048+1024}")
    for hh in range(4): reads3(hh)
    for hh in range(8):
        b = FR + 8*(hh % 4)
        a(f"s_waitcnt lgkmcnt({3*min(3, 7-hh)})")
        a(f"v_mfma_f32_32x32x16_bf16 {vr(ACC,16)}, {vr(b+4,4)}, {vr(b,4)}, {vr(ACC,16)}")
        if hh + 4 < 8: reads3(hh+4)
    a(f"""
s_lshr_b32 s73, s73, 4
s_cbranch_scc1 P3_LOOP
s_nop 10
""")
    stamp(a, 10)
    for i in range(16): a(f"v_fmac_f32 v{B+i}, v{ACC+i}, v{T3+1}")
    for i in range(8): a(f"v_cvt_pk_bf16_f32 v{X+i}, v{B+2*i}, v{B+2*i+1}")
    a(f"""
buffer_store_dwordx4 {vr(X,4)}, v14, s[44:47], 0 offen
buffer_store_dwordx4 {vr(X+4,4)}, v14, s[44:47], 0 offen offset:16
s_or_b32 s64, s2, s27
s_cbranch_scc1 L_END
s_mov_b32 s64, {WS_E:#x}
s_mov_b64 exec, 1
buffer_store_dword v{T+2}, v{T+3}, s[32:35], s64 offen sc1
L_END:
""")
    endpgm(a)
    a("L_EXIT:\ns_endpgm")
    a(f"""
P2_FALLBACK:
s_mov_b32 s68, 1
s_mov_b32 s64, s54
s_add_u32 s65, s54, 0x20000
v_mov_b32 v{T+2}, 0xff800000
FB_MAX:
buffer_load_dwordx4 {vr(FA,4)}, v3, s[32:35], s64 offen sc1
s_add_u32 s64, s64, 2048
s_waitcnt vmcnt(0)
v_mfma_f32_32x32x16_bf16 {vr(S0,16)}, {vr(FA,4)}, {vr(Q0,4)}, 0
s_nop 15
""")
    for i in range(8): a(f"v_max3_f32 v{T+2}, v{T+2}, v{S0+2*i}, v{S0+2*i+1}")
    a(f"""
s_cmp_lt_u32 s64, s65
s_cbranch_scc1 FB_MAX
v_mov_b32 v{T+3}, v{T+2}
s_nop 1
v_permlane32_swap_b32 v{T+3}, v{T+2}
s_nop 1
v_max_f32 v{T+2}, v{T+2}, v{T+3}
""")
    for i in range(16): a(f"v_mul_f32 v{M0+i}, -1.0, v{T+2}")
    for i in range(8): a(f"v_mov_b64 {vr(O0+2*i,2)}, 0")
    a(f"""
s_mov_b32 s64, s54
FB_ACC:
buffer_load_dwordx4 {vr(FA,4)}, v3, s[32:35], s64 offen sc1
s_mov_b64 exec, s[58:59]
buffer_load_dwordx4 {vr(FA+4,4)}, v3, s[32:35], s64 offen offset:1024 sc1
buffer_load_dwordx4 {vr(FA+8,4)}, v3, s[32:35], s64 offen offset:1280 sc1
s_mov_b64 exec, -1
s_add_u32 s64, s64, 2048
s_waitcnt vmcnt(0)
{qk(S0, FA, Q0, M0)}
s_nop 15
""")
    for i in range(16): a(f"v_exp_f32 v{S0+i}, v{S0+i}")
    a(f"""
s_nop 1
{smf(O0, FA+4, S0)}
{smf(O0, FA+8, S0+8)}
s_cmp_lt_u32 s64, s65
s_cbranch_scc1 FB_ACC
s_nop 15
s_branch P2_NORM
""")
    return name

def main():
    body = Asm()
    name = gen(body)
    vg, sg = (256, 100) if STAMP else (232, 80)
    out = f"""; generated by gen/gen2.py (own generator script)
; @launch grid=(256,1,1) block=(512,1,1) lds={LDS_BYTES}
.amdgcn_target "amdgcn-amd-amdhsa--gfx950"
.text
""" + body.text() + f""".section .rodata,"a"
.p2align 6
.amdhsa_kernel {name}
  .amdhsa_next_free_vgpr {vg}
  .amdhsa_next_free_sgpr {sg}
  .amdhsa_accum_offset {vg}
  .amdhsa_group_segment_fixed_size 0
  .amdhsa_kernarg_size 96
  .amdhsa_user_sgpr_count 2
  .amdhsa_user_sgpr_kernarg_segment_ptr 1
  .amdhsa_system_sgpr_workgroup_id_x 1
.end_amdhsa_kernel
"""
    if EXP & 1:
        out = out.replace("v[136:139], v22,", "v[136:139], v3,").replace("v[140:143], v22,", "v[140:143], v3,")
        out = out.replace("v[144:147], v23, s[32:35], s59 offen offset:1024", "v[144:147], v3, s[32:35], s59 offen offset:1024").replace("v[148:151], v23, s[32:35], s59 offen offset:1280", "v[148:151], v3, s[32:35], s60 offen offset:1024")
    if EXP & 2:
        for r in ("v[136:139]", "v[140:143]", "v[144:147]", "v[148:151]", "v[128:131]", "v[132:135]"):
            out = "\n".join((l.replace(" sc1", "") if ("buffer_store_dwordx4 " + r) in l else l) for l in out.split("\n"))
    if EXP & 4:
        out = "\n".join(l for l in out.split("\n") if not ("buffer_store_dwordx4 v[128:131]" in l or "buffer_store_dwordx4 v[132:135]" in l))
    path = sys.argv[1] if len(sys.argv) > 1 else f"cdna_kernels/{NAME}.s"
    open(path, "w").write(out)
main()
```

```python
import math, struct, sys, os

NAME = "gated_mix__mha_block__moe_arch_mod__prompt"
E = lambda k, d: int(os.environ.get(k, str(d)))
STAMP = bool(os.environ.get("STAMP"))
EXP = E("EXP", 0)

WS_KV = 0x200000
WS_OF = 0x600000
WS_G  = 0x800000
WS_Y  = 0x860000
WS_KG = 0x816000
WS_F3 = 0x815000
WS_E  = 0x818000
WS_F1 = 0x820000
WS_PRE = 0x880000
WS_F2 = 0x840000
FSH = E("FSH", 5)
WS_SIZE = 0x10000000
POLL_MAX = 1 << 18

L_WO = 0x00000; L_OF = 0x10000
L_FG = 0x10000; L_FD = 0x14000; L_XS = 0x16000
L_OX = 0x20000; L_LS = 0x24000; L_Q = 0x25000; L_MISC = 0x27000
LDS_BYTES = 0x28000

def f32bits(x): return struct.unpack("<I", struct.pack("<f", x))[0]
LOG2E = 1.4426950408889634
QSCALE = 0.25 * LOG2E

class Asm:
    def __init__(self): self.l = []
    def __call__(self, s):
        for line in s.strip("\n").split("\n"):
            line = line.strip()
            if not line: continue
            if line.endswith(":") : self.l.append(line)
            else: self.l.append("    " + line)
    def text(self): return "\n".join(self.l) + "\n"

def vr(a, n): return f"v[{a}:{a+n-1}]"
def srd(a, d, lo, nbytes):
    a(f"s_mov_b32 s{d}, s{lo}\ns_mov_b32 s{d+1}, s{lo+1}\ns_mov_b32 s{d+2}, {nbytes:#x}\ns_mov_b32 s{d+3}, 0x00020000")

NST = 10
XS_SRD = 96
MAP = E("MAP", 0); ROT = E("ROT", 0)
ROTI = {0: "s_mov_b32 s55, 0", 1: "s_lshl_b32 s55, s31, 14", 2: "s_lshl_b32 s55, s48, 12", 3: "s_lshl_b32 s55, s31, 13"}[ROT]
SL1 = E("SL1", 4); SL2 = E("SL2", 4); PQ = E("PQ", 5); PS = E("PS", 11); NS = E("NS", 5); LA = E("LA", 5); FLAGAT = E("FLAGAT", 14)
def stamp(a, slot):
    if not STAMP: return
    a(f"s_memrealtime s[82:83]\ns_waitcnt lgkmcnt(0)\ns_mov_b32 s{86+slot if slot < 10 else 85}, s82")
def stampc(a, slot):
    if not STAMP: return
    a(f"s_memtime s[82:83]\ns_waitcnt lgkmcnt(0)\ns_sub_u32 s{86+slot}, s82, s{86+slot}")
def endpgm(a):
    if STAMP:
        a(f"""s_waitcnt vmcnt(0)
s_memrealtime s[82:83]
s_waitcnt lgkmcnt(0)
s_mov_b64 exec, 1
s_lshl_b32 s79, s2, 3
s_add_u32 s79, s79, s27
s_lshl_b32 s79, s79, 6
s_add_u32 s79, s79, 0x1000000
v_mov_b32 v249, s79
v_mov_b32 v232, s80
v_mov_b32 v233, s82""")
        for i in range(NST): a(f"v_mov_b32 v{234+i}, s{86+i}")
        a("v_mov_b32 v244, s85\nv_mov_b32 v245, 0\nv_mov_b32 v246, 0\nv_mov_b32 v247, 0")
        for i in range(4): a(f"global_store_dwordx4 v249, {vr(232+4*i,4)}, s[24:25] offset:{16*i}")
    a("s_endpgm")

def umax_reduce64(a, v, t):
    for pat in ("quad_perm:[1,0,3,2]", "quad_perm:[2,3,0,1]", "row_half_mirror", "row_mirror"):
        a(f"s_nop 1\nv_max_u32_dpp v{v}, v{v}, v{v} {pat} row_mask:0xf bank_mask:0xf")
    for sw in ("v_permlane16_swap_b32", "v_permlane32_swap_b32"):
        a(f"v_mov_b32 v{t}, v{v}\ns_nop 1\n{sw} v{t}, v{v}\ns_nop 1\nv_max_u32 v{v}, v{v}, v{t}")

SEC_A, SEC_B, SEC_C = 1, 2, 0

def gen(a):
    name = NAME + "_kernel"
    a.l.append(f".globl {name}\n.p2align 8\n.type {name},@function\n{name}:")
    if STAMP:
        a("s_memrealtime s[80:81]")
        for i in range(NST): a(f"s_mov_b32 s{86+i}, 0")
    a("""
s_cmp_ge_u32 s2, 256
s_cbranch_scc1 L_EXIT
s_load_dwordx4 s[4:7], s[0:1], 0
s_load_dwordx2 s[24:25], s[0:1], 88
s_load_dwordx2 s[8:9], s[0:1], 16
s_load_dwordx8 s[12:19], s[0:1], 32
s_load_dwordx4 s[20:23], s[0:1], 64
v_lshrrev_b32 v1, 6, v0
v_and_b32 v2, 63, v0
s_and_b32 s28, s2, 7
v_readfirstlane_b32 s27, v1
s_lshr_b32 s29, s2, 3
s_lshr_b32 s48, s28, 1
s_lshl_b32 s48, s48, 3
s_lshr_b32 s31, s29, 2
s_add_u32 s48, s48, s31
s_and_b32 s30, s29, 3
s_and_b32 s49, s28, 1
s_lshl_b32 s49, s49, 2
s_add_u32 s49, s49, s30
s_lshl_b32 s50, s30, 1
s_add_u32 s50, s50, s31
s_and_b32 s50, s50, 7
v_lshlrev_b32 v3, 4, v2
""")
    if MAP == 1:
        a("s_mov_b32 s48, s29\ns_mov_b32 s49, s28\ns_and_b32 s50, s29, 7")
    if MAP == 2:
        a("""s_lshr_b32 s48, s28, 2
s_lshl_b32 s48, s48, 4
s_lshr_b32 s50, s29, 1
s_add_u32 s48, s48, s50
s_and_b32 s49, s28, 3
s_lshl_b32 s49, s49, 1
s_and_b32 s51, s29, 1
s_add_u32 s49, s49, s51
s_lshl_b32 s51, s51, 2
s_add_u32 s50, s50, s51
s_and_b32 s50, s50, 7""")
    a("""
s_cmp_lt_u32 s27, 4
s_cbranch_scc1 P1_COMPUTE
""")
    a(f"""
s_sub_u32 s51, s27, 4
s_and_b32 s52, s51, 1
s_lshl_b32 s57, s48, 16
s_lshl_b32 s58, s52, 15
s_add_u32 s57, s57, s58
s_mul_i32 s58, s52, {32*3072}
s_lshl_b32 s59, s49, 7
s_add_u32 s58, s58, s59
v_lshrrev_b32 v4, 3, v2
v_and_b32 v5, 7, v2
v_lshrrev_b32 v6, 1, v4
v_xor_b32 v6, v5, v6
v_lshlrev_b32 v6, 4, v6
v_lshl_add_u32 v6, v4, 10, v6
v_add_u32 v8, s57, v6
v_xor_b32 v9, 64, v8
v_lshlrev_b32 v7, 1, v4
v_and_b32 v7, 4, v7
v_xor_b32 v5, v5, v7
v_lshlrev_b32 v5, 4, v5
v_mul_u32_u24 v4, 3072, v4
v_add3_u32 v10, v4, v5, s58
s_cmp_lt_u32 s51, 2
s_cselect_b64 vcc, -1, 0
s_mov_b32 s56, 0x30000
s_cmovk_i32 s56, 128
s_mov_b32 s38, 0x180000
s_cmov_b32 s38, 0x200000
s_movk_i32 s60, {8*3072-1024}
s_cmovk_i32 s60, 7168
s_movk_i32 s59, {SEC_A*1024}
s_cmovk_i32 s59, 0
s_mov_b32 s39, 0x00020000
v_cndmask_b32 v8, v10, v8, vcc
v_cndmask_b32 v9, v10, v9, vcc
s_lshl_b32 s61, s51, 12
s_mov_b32 s62, 0
s_mov_b32 s53, s50
s_mov_b32 s65, {WS_E:#x}
s_mov_b32 s54, 1
s_waitcnt lgkmcnt(0)
s_cselect_b32 s36, s4, s6
s_cselect_b32 s37, s5, s7
s_load_dword s26, s[24:25], s65
P1_LD_LOOP:
s_cmp_lt_u32 s62, {LA}
s_cbranch_scc1 P1_LD_ISSUE
s_waitcnt vmcnt({4*(LA-1)}) lgkmcnt(0)
s_barrier
P1_LD_ISSUE:
s_and_b32 s64, s62, 7
s_lshl_b32 s64, s64, 14
s_add_u32 m0, s64, s61
s_and_b32 s63, s53, 7
s_mul_i32 s63, s63, s56
s_add_u32 s63, s63, s59
""")
    for i in range(4):
        a(f"buffer_load_dwordx4 v{8+(i&1)}, s[36:39], s63 offen offset:{i*1024} lds")
        if i != 3: a("s_add_u32 s63, s63, s60")
    a(f"""
s_add_u32 s53, s53, s54
s_add_u32 s62, s62, 1
s_cmp_eq_u32 s62, 8
s_cbranch_scc0 P1_LD_N8
s_mov_b32 s36, s6
s_mov_b32 s37, s7
s_mov_b32 s38, 0x180000
s_mov_b32 s56, 0x30000
s_movk_i32 s60, {8*3072-1024}
s_movk_i32 s59, {SEC_B*1024}
v_mov_b32 v8, v10
v_mov_b32 v9, v10
s_lshr_b32 s53, s51, 1
s_add_u32 s53, s53, s50
s_mov_b32 s54, 2
P1_LD_N8:
s_cmp_eq_u32 s62, 12
s_cmovk_i32 s59, {SEC_C*1024}
s_cmp_lt_u32 s62, 16
s_cbranch_scc1 P1_LD_LOOP
""")
    srd(a, 32, 24, WS_SIZE)
    for k in range(LA-1, 0, -1):
        a(f"s_waitcnt vmcnt({4*k})\ns_barrier")
    a("""
s_waitcnt vmcnt(0) lgkmcnt(0)
s_barrier
s_mul_i32 s26, s26, 0x9e3779b1
s_add_u32 s26, s26, 0x7f4a7c15
s_branch P2_SETUP
""")
    XR = 128; WB = 64; ACC = [32, 48]
    a(f"""
P1_COMPUTE:
s_and_b32 s51, s27, 1
s_lshr_b32 s52, s27, 1
s_mov_b32 s65, {WS_E:#x}
v_mov_b32 v21, 0
v_lshrrev_b32 v4, 5, v2
v_and_b32 v5, 31, v2
v_bfe_u32 v6, v2, 1, 3
v_xor_b32 v6, v6, v4
v_lshlrev_b32 v6, 4, v6
s_lshl_b32 s53, s51, 12
v_lshl_add_u32 v6, v5, 7, v6
v_add_u32 v10, s53, v6
v_xor_b32 v11, 32, v10
v_xor_b32 v12, 64, v10
v_xor_b32 v13, 0x60, v10
v_bfe_u32 v6, v2, 2, 2
v_lshl_add_u32 v7, v4, 3, v6
v_lshlrev_b32 v7, 7, v7
v_lshrrev_b32 v6, 1, v6
v_xor_b32 v6, s52, v6
v_lshl_add_u32 v7, v6, 6, v7
v_bfe_u32 v6, v2, 4, 1
v_lshl_add_u32 v7, v6, 5, v7
v_and_b32 v6, 3, v2
v_lshl_add_u32 v14, v6, 3, v7
v_add_u32 v15, 0x10000, v14
v_add_u32 v16, 0x10000, v10
v_add_u32 v17, 0x10000, v11
v_add_u32 v18, 0x10000, v12
v_add_u32 v19, 0x10000, v13
s_waitcnt lgkmcnt(0)
""")
    srd(a, 32, 24, WS_SIZE)
    a("buffer_load_dword v21, v21, s[32:35], s65 offen")
    a("s_cmp_lg_u32 s27, 0\ns_cbranch_scc1 P1_NORG")
    X = 128; WR = 160; WGT = 164; P = 168
    srd(a, 36, 4, 0x200000); srd(a, 40, 12, 1024); srd(a, 44, 20, 1024)
    a("""
s_lshl_b32 s66, s48, 3
s_add_u32 s66, s66, s49
s_lshl_b32 s53, s66, 13
s_add_u32 s54, s53, 4096
""")
    a(f"buffer_load_dwordx4 {vr(WR,4)}, v3, s[40:43], 0 offen")
    a(f"buffer_load_dwordx4 {vr(WGT,4)}, v3, s[44:47], 0 offen")
    for i in range(8):
        a(f"buffer_load_dwordx4 {vr(X+4*i,4)}, v3, s[36:39], s{53 if i < 4 else 54} offen offset:{(i%4)*1024}")
    for i in range(8): a(f"v_mov_b64 {vr(P+2*i,2)}, 0")
    a(f"""
v_mov_b32 v6, {L_MISC+4:#x}
ds_write_b32 v6, v{P}
v_and_b32 v6, 1, v2
v_cmp_eq_u32 vcc, 0, v6
v_and_b32 v6, 2, v2
v_cmp_eq_u32 s[56:57], 0, v6
v_and_b32 v24, 3, v2
v_bfe_u32 v7, v2, 4, 1
v_lshl_add_u32 v24, v7, 2, v24
s_lshl_b32 s53, s66, 3
v_add_u32 v24, s53, v24
s_lshl_b32 s55, s2, 8
s_add_u32 s55, s55, {WS_Y:#x}
v_lshlrev_b32 v7, 2, v2
s_waitcnt vmcnt(0)
buffer_store_dword v{P}, v7, s[32:35], s55 offen sc1
""")
    for k in range(4):
        for i in range(8):
            a(f"v_dot2c_f32_bf16 v{P+i}, v{X+4*i+k}, v{WR+k}")
            a(f"v_dot2c_f32_bf16 v{P+8+i}, v{X+4*i+k}, v{WGT+k}")
    a("s_nop 2")
    for i in range(8): a(f"v_permlane32_swap_b32 v{P+i}, v{P+8+i}")
    a("s_nop 1")
    for i in range(8): a(f"v_add_f32 v{P+i}, v{P+i}, v{P+8+i}")
    a("s_nop 1")
    for i in range(4): a(f"v_permlane16_swap_b32 v{P+i}, v{P+4+i}")
    a("s_nop 1")
    for i in range(4): a(f"v_add_f32 v{P+i}, v{P+i}, v{P+4+i}")
    for pat in ("row_ror:8", "row_ror:4", "row_ror:2", "row_ror:1"):
        for i in range(4): a(f"v_add_f32_dpp v{P+i}, v{P+i}, v{P+i} {pat} row_mask:0xf bank_mask:0xf")
    a(f"""
v_cndmask_b32 v{P}, v{P+1}, v{P}, vcc
v_cndmask_b32 v{P+2}, v{P+3}, v{P+2}, vcc
v_cndmask_b32 v{P}, v{P+2}, v{P}, s[56:57]
v_cvt_pk_bf16_f32 v{P}, v{P}, v{P}
v_and_b32 v{P}, 0xffff0000, v{P}
v_mul_f32 v25, {f32bits(-LOG2E):#x}, v{P}
v_exp_f32 v25, v25
v_ashrrev_i32 v26, 31, v{P}
v_or_b32 v26, 0x80000000, v26
v_add_f32 v25, 1.0, v25
v_rcp_f32 v25, v25
v_xor_b32 v26, v{P}, v26
v_and_b32 v26, 0xffff0000, v26
v_sub_u32 v7, 0x7ff, v24
v_or_b32 v26, v26, v7
v_cvt_pk_bf16_f32 v25, v25, v25
v_and_b32 v25, 0xffff0000, v25
v_lshlrev_b32 v24, 2, v24
s_mov_b32 s53, {WS_G:#x}
s_mov_b32 exec_lo, 0
buffer_store_dword v25, v24, s[32:35], s53 offen sc1
v_mov_b32 v26, 0
s_mov_b32 exec_lo, -1
""")
    umax_reduce64(a, 26, 27)
    a("P1_NORG:")
    a(f"""
s_lshl_b32 s53, s48, 1
s_add_u32 s53, s53, s51
s_lshl_b32 s54, s49, 2
s_lshl_b32 s55, s52, 1
s_add_u32 s54, s54, s55
s_lshl_b32 s59, s53, 11
s_lshl_b32 s57, s54, 17
s_add_u32 s59, s59, s57
s_add_u32 s59, s59, {WS_KV:#x}
s_add_u32 s60, s59, 0x20000
s_lshl_b32 s54, s49, 5
s_add_u32 s54, s54, s48
s_lshl_b32 s54, s54, {FSH}
s_add_u32 s54, s54, {WS_F1:#x}
s_mov_b32 s64, {f32bits(QSCALE):#x}
s_mov_b32 s65, {f32bits(QSCALE):#x}
v_and_b32 v6, 0x33, v2
v_and_b32 v7, 4, v2
v_lshl_or_b32 v6, v7, 1, v6
v_and_b32 v7, 8, v2
v_lshrrev_b32 v7, 1, v7
v_or_b32 v6, v6, v7
v_lshlrev_b32 v22, 4, v6
v_and_b32 v6, 0x2f, v2
v_lshlrev_b32 v6, 4, v6
v_bfe_u32 v7, v2, 4, 1
v_lshl_add_u32 v23, v7, 17, v6
s_lshl_b32 s56, s52, 12
s_lshl_b32 s57, s51, 10
s_add_u32 s56, s56, s57
s_add_u32 s56, s56, {L_Q:#x}
v_add_u32 v1, s56, v3
""")
    stamp(a, 0)
    NWB = 12
    steps = []
    for n in range(16):
        if n < 8:
            for s in range(4): steps.append((n, 0, 4*n+s, 0x2000 + s*2048))
        else:
            m = n & 3
            for s in range(8): steps.append((n, 1 if n < 12 else 2, 8*m+s, s*2048))
    def rd(idx):
        n, p, ks, wo = steps[idx]
        slot = n & 7; hi = slot >= 4; so = (slot & 3) * 0x4000
        wb = WB + 4*(idx % NWB)
        r = []
        if p == 0: r.append(f"ds_read_b128 {vr(XR+4*ks,4)}, v{(16 if hi else 10)+(ks&3)} offset:{so}")
        for jj in range(2): r.append(f"ds_read_b64_tr_b16 {vr(wb+2*jj,2)}, v{15 if hi else 14} offset:{so+wo+jj*512}")
        return r
    def mf(idx):
        n, p, ks, wo = steps[idx]
        wb = vr(WB + 4*(idx % NWB), 4); x = vr(XR+4*ks, 4); acc = vr(ACC[p & 1], 16)
        c = acc if ks else "0"
        return f"v_mfma_f32_32x32x16_bf16 {acc}, {x}, {wb}, {c}" if p == 1 else f"v_mfma_f32_32x32x16_bf16 {acc}, {wb}, {x}, {c}"
    PK = 112
    def epi(p):
        A_ = ACC[p & 1]
        if p == 2:
            for i in range(8): a(f"v_pk_mul_f32 {vr(A_+2*i,2)}, {vr(A_+2*i,2)}, s[64:65]")
        o = PK + (8 if p else 0)
        for i in range(8): a(f"v_cvt_pk_bf16_f32 v{o+i}, v{A_+2*i}, v{A_+1+2*i}")
        if p == 0:
            a(f"buffer_store_dwordx4 {vr(o,4)}, v22, s[32:35], s59 offen sc1\nbuffer_store_dwordx4 {vr(o+4,4)}, v22, s[32:35], s60 offen sc1")
        elif p == 1:
            a(f"buffer_store_dwordx4 {vr(o,4)}, v23, s[32:35], s59 offen offset:1024 sc1\nbuffer_store_dwordx4 {vr(o+4,4)}, v23, s[32:35], s59 offen offset:1280 sc1")
        else:
            a(f"ds_write_b128 v1, {vr(o,4)}\nds_write_b128 v1, {vr(o+4,4)} offset:2048")
    pend = []
    for n in range(16):
        idxs = [i for i, st in enumerate(steps) if st[0] == n]
        a("s_barrier")
        if n == 0: stamp(a, 1)
        if n == FLAGAT:
            a("""
s_cmp_lg_u32 s27, 0
s_cbranch_scc1 P1_NOKG
s_mov_b64 exec, 1
buffer_store_dword v27, v7, s[32:35], s54 offen sc1
buffer_store_dwordx2 v[26:27], v7, s[32:35], s53 offen sc1
s_mov_b64 exec, -1
P1_NOKG:
""")
            stamp(a, 3)
        reads = [rd(i) for i in idxs]
        flat = [x for r in reads for x in r]
        per = -(-len(flat) // max(1, len(pend))) if pend else len(flat)
        k = 0
        for pm in pend:
            a(mf(pm))
            for x in flat[k:k+per]: a(x)
            k += per
        for x in flat[k:]: a(x)
        half = len(idxs)//2 if n < 15 else len(idxs)
        nr = len(reads[0])
        for j in range(half):
            a(f"s_waitcnt lgkmcnt({min(15, nr*(len(idxs)-1-j))})")
            a(mf(idxs[j]))
        if n in (8, 12):
            epi(0 if n == 8 else 1)
        if n == FLAGAT - 1:
            a(f"""
s_waitcnt vmcnt(0)
v_readfirstlane_b32 s26, v21
v_mov_b32 v7, 0
s_nop 1
s_mul_i32 s26, s26, 0x9e3779b1
s_add_u32 s26, s26, 0x7f4a7c15
s_lshl_b32 s53, s66, 3
s_add_u32 s53, s53, {WS_KG:#x}
v_mov_b32 v27, s26
""")
        pend = idxs[half:]
        if n < 15: a("s_waitcnt lgkmcnt(0)")
    a("s_nop 11")
    epi(2)
    stamp(a, 2)
    Q0, Q1, S0, S1, O0, O1, M0, M1, T = 4, 8, 16, 32, 48, 64, 80, 96, 112
    FS = [192 - 12*NS + 12*i + 64 for i in range(NS)]
    FW = 3
    a(f"""
P2_SETUP:
s_and_b32 s51, s27, 3
s_lshr_b32 s52, s27, 2
s_lshl_b32 s53, s49, 2
s_add_u32 s53, s53, s51
s_lshl_b32 s54, s53, 17
s_add_u32 s54, s54, {WS_KV:#x}
s_lshl_b32 s57, s52, 16
{ROTI}
s_add_u32 s57, s57, s55
s_and_b32 s57, s57, 0x1ffff
v_mov_b32 v12, 0xdddddddd
v_and_b32 v14, 27, v2
v_cmp_eq_u32 vcc, 16, v14
v_mov_b32 v15, 0x3f803f80
s_mov_b32 s58, 0xffff
s_mov_b32 s59, 0xffff
v_cndmask_b32 v14, 0, v15, vcc
v_mov_b32 v15, v14
s_lshl_b32 s56, s51, 11
s_add_u32 s56, s56, {L_Q:#x}
v_add_u32 v13, s56, v3
""")
    for F in FS:
        for i in range(4): a(f"v_mov_b64 {vr(F+4+2*i,2)}, v[14:15]")
    vq = []
    def ld(t):
        F = FS[t % NS]; r = []
        if t % 2 == 0:
            r += ["s_add_u32 s64, s54, s57", "s_add_u32 s57, s57, 4096", "s_and_b32 s57, s57, 0x1ffff"]
        o = (t % 2) * 2048
        r += [f"buffer_load_dwordx4 {vr(F,4)}, v3, s[32:35], s64 offen offset:{o} sc1", "s_mov_b64 exec, s[58:59]",
              f"buffer_load_dwordx4 {vr(F+4,4)}, v3, s[32:35], s64 offen offset:{o+1024} sc1",
              f"buffer_load_dwordx4 {vr(F+8,4)}, v3, s[32:35], s64 offen offset:{o+1280} sc1", "s_mov_b64 exec, -1"]
        vq.extend([("t", t)]*3)
        return r
    def wait_tile(t):
        last = max(i for i, x in enumerate(vq) if x == ("t", t))
        return f"s_waitcnt vmcnt({len(vq)-1-last})"
    a(f"""
s_cmp_lg_u32 s27, 4
s_cbranch_scc1 P2_BQ
s_lshl_b32 s64, s49, {5+FSH}
s_add_u32 s64, s64, {WS_F1:#x}
v_and_b32 v4, 31, v2
v_lshlrev_b32 v4, {FSH}, v4
s_mov_b32 s65, {POLL_MAX}
P2_POLL:
buffer_load_dword v5, v4, s[32:35], s64 offen sc1
s_sub_u32 s65, s65, 1
s_cbranch_scc1 P2_BQ
s_waitcnt vmcnt(0)
v_cmp_ne_u32 vcc, s26, v5
s_cbranch_vccz P2_BQ
s_sleep {SL1}
s_branch P2_POLL
P2_BQ:
s_waitcnt lgkmcnt(0)
s_barrier
""")
    stamp(a, 4)
    for t in range(NS-1):
        for x in ld(t): a(x)
    a(f"""
ds_read_b128 {vr(Q0,4)}, v13
ds_read_b128 {vr(Q1,4)}, v13 offset:1024
""")
    a(f"""
s_min_u32 s60, s29, 27
s_mul_i32 s61, s28, 28
s_add_u32 s60, s60, s61
s_lshl_b32 s63, s27, 10
v_lshrrev_b32 v{T+1}, 3, v2
v_and_b32 v{T+2}, 7, v2
v_lshlrev_b32 v{T+3}, 1, v{T+1}
v_and_b32 v{T+3}, 4, v{T+3}
v_xor_b32 v{T+2}, v{T+2}, v{T+3}
v_lshlrev_b32 v{T+2}, 4, v{T+2}
v_mul_u32_u24 v{T}, 3584, v{T+1}
v_add_u32 v{T}, v{T}, v{T+2}
v_lshl_add_u32 v{T+1}, v{T+1}, 10, v{T+2}
s_lshl_b32 s70, s49, 7
s_lshl_b32 s71, s27, 13
s_add_u32 s70, s70, s71
s_lshr_b32 s77, s27, 1
s_cmp_gt_u32 s29, 27
s_cselect_b32 s76, 0, s27
s_cselect_b32 s77, 0, s77
s_cselect_b32 s78, 0, 1
s_cmp_gt_u32 s27, 3
s_cselect_b32 s78, 0, s78
s_lshl_b32 s61, s28, 3
s_add_u32 s61, s61, s27
s_mul_i32 s61, s61, {8*3584}
s_lshl_b32 s62, s29, 7
s_add_u32 s61, s61, s62
s_and_b32 s67, s27, 1
s_lshl_b32 s68, s67, 9
s_lshl_b32 s62, s60, 13
s_add_u32 s62, s62, s68
s_lshl_b32 s68, s67, 12
s_add_u32 s68, s68, {L_FD:#x}
v_lshrrev_b32 v{T+6}, 5, v2
v_lshl_add_u32 v{T+6}, v{T+6}, 9, v3
""")
    for i in range(16): a(f"v_mov_b64 {vr(O0+2*i,2)}, 0")
    srd(a, 36, 14, 512*3584); srd(a, 40, 16, 512*3584); srd(a, 44, 18, 512*3584); srd(a, 72, 8, 0x80000)
    a(f"""
{wait_tile(0)} lgkmcnt(0)
v_mfma_f32_32x32x16_bf16 {vr(S0,16)}, {vr(FS[0],4)}, {vr(Q0,4)}, 0
v_mfma_f32_32x32x16_bf16 {vr(S1,16)}, {vr(FS[0],4)}, {vr(Q1,4)}, 0
s_nop 10
""")
    stamp(a, 5)
    for S, M, t in ((S0, M0, T+2), (S1, M1, T+4)):
        a(f"v_max3_f32 v{t}, v{S}, v{S+1}, v{S+2}")
        for i in range(6): a(f"v_max3_f32 v{t}, v{t}, v{S+3+2*i}, v{S+4+2*i}")
        a(f"v_max_f32 v{t}, v{t}, v{S+15}\nv_mov_b32 v{t+1}, v{t}\ns_nop 1\nv_permlane32_swap_b32 v{t+1}, v{t}\ns_nop 1")
        a(f"v_max_f32 v{t}, v{t}, v{t+1}\nv_mul_f32 v{M}, -1.0, v{t}\nv_mul_f32 v{M+1}, -1.0, v{t}")
        for i in range(1, 8): a(f"v_mov_b64 {vr(M+2*i,2)}, {vr(M,2)}")
        if S == S0:
            a(f"s_nop 1\nv_mfma_f32_32x32x16_bf16 {vr(S0,16)}, {vr(FS[0],4)}, {vr(Q0,4)}, {vr(M0,16)}")
    def smf(o, v, p): return f"v_smfmac_f32_32x32x32_bf16 {vr(o,16)}, {vr(v,4)}, {vr(p,8)}, v12"
    def qk(d, k, q, mn): return f"v_mfma_f32_32x32x16_bf16 {vr(d,16)}, {vr(k,4)}, {vr(q,4)}, {vr(mn,16)}"
    stamp(a, 6)
    stampc(a, 7)
    prio_at = {0: 3, E("P2", 36): 2, E("P1", 56): 1, E("P0", 62): 0}
    KG = T+8
    extras = {}
    def addx(u, lines, nv=0): extras.setdefault(u, []).append((lines, nv))
    def hook(u, reg, val, lab): addx(u, [f"s_cmp_eq_u32 {reg}, {val}", f"s_cbranch_scc1 {lab}", f"{lab}_RET:"])
    U1 = E("U1", 1); SP = E("SP", 3); UK = U1 + 10; UC = U1 + 3*SP + 2*NS; US1 = E("US1", 23); US2 = E("US2", 24)
    assert UC < US1 and UK + 10 <= US1
    hook(U1, "s27", 1, "FW_LD")
    hook(UK, "s27", 1, "FW_KEYS")
    hook(US1, "s76", 1, "FW_S1")
    hook(US2, "s77", 3, "FW_S2A")
    hook(US2+8, "s77", 3, "FW_S2")
    hook(US2+20, "s77", 3, "FW_F3")
    for k in range(4):
        srdn, ldsb = [(36, L_FG), (40, L_FG+0x2000)][k & 1]
        half = k >> 1
        addx(U1 + SP*k, ["s_cmp_eq_u32 s78, 0", f"s_cbranch_scc1 FWS{k}", f"s_add_u32 m0, s63, {ldsb + half*0x1000:#x}", f"s_add_u32 s65, s61, {half*32*3584}",
                         f"buffer_load_dwordx4 v{T}, s[{srdn}:{srdn+3}], s65 offen lds", f"FWS{k}:"])
        addx(2 + 2*k, ["s_cmp_lg_u32 s77, 3", f"s_cbranch_scc1 FWD{k}", f"s_add_u32 m0, s68, {k*0x400:#x}", f"s_add_u32 s65, s62, {k*2048}",
                         f"buffer_load_dwordx4 v{T+6}, s[44:47], s65 offen lds", f"FWD{k}:"])
    addx(UC, ["s_cmp_eq_u32 s78, 0", "s_cbranch_scc1 FWSC", f"v_mov_b32 v{T+2}, {L_MISC+4:#x}", f"v_mov_b32 v{T+3}, 1", "s_mov_b64 exec, 1", f"ds_add_u32 v{T+2}, v{T+3}", "s_mov_b64 exec, -1", "FWSC:"])
    for g in range(8):
        addx(E('UWO', 27) + 4*g, [f"s_add_u32 m0, s63, {L_WO + g*0x2000:#x}", f"s_add_u32 s65, s70, {g*0x10000:#x}", f"buffer_load_dwordx4 v{T+1}, s[72:75], s65 offen lds"], 1)
    for kt in range(32):
        F = FS[kt % NS]; Fp = FS[(kt-1) % NS]; Fn = FS[(kt+1) % NS]
        for q in range(2):
            u = 2*kt+q
            cur, nxt = (S0, S1) if q == 0 else (S1, S0)
            Oc, On = (O0, O1) if q == 0 else (O1, O0)
            if u in prio_at: a(f"s_setprio {prio_at[u]}")
            if E("QST", 0) and u in (8, 16, 24, 32): stamp(a, {8: 0, 16: 1, 24: 2, 32: 3}[u])
            for i in range(16):
                if i == 2:
                    if u: a(smf(On, (Fp if q == 0 else F) + 8, nxt + 8))
                    if q == 0 and kt + NS - 1 < 32:
                        for x in ld(kt + NS - 1): a(x)
                if i == PQ and u != 63:
                    if q == 1:
                        a(wait_tile(kt+1))
                    a(qk(nxt, F if q == 0 else Fn, Q1 if q == 0 else Q0, M1 if q == 0 else M0))
                if i == 8 and u in extras:
                    for lines, nv in extras[u]:
                        for x in lines: a(x)
                        vq.extend([("x", u)]*nv)
                if i == PS: a(smf(Oc, F + 4, cur))
                a(f"v_exp_f32 v{cur+i}, v{cur+i}")
    FL = FS[31 % NS]; FA = FS[0]
    a(f"s_nop 1\n{smf(O1, FL+8, S1+8)}")
    stampc(a, 7)
    stamp(a, 8)
    a(f"""
s_lshl_b32 s64, s27, 11
s_xor_b32 s65, s64, 0x2000
v_add_u32 v14, s64, v3
v_add_u32 v15, s65, v3
s_lshr_b32 s64, s64, 2
s_lshr_b32 s65, s65, 2
v_lshlrev_b32 v{T+2}, 3, v2
v_add_u32 v{T+3}, s65, v{T+2}
v_add_u32 v{T+2}, s64, v{T+2}
v_add_u32 v14, {L_OX:#x}, v14
v_add_u32 v15, {L_OX:#x}, v15
v_add_u32 v{T+2}, {L_LS:#x}, v{T+2}
v_add_u32 v{T+3}, {L_LS:#x}, v{T+3}
v_mov_b32 v{O0+9}, v{M0}
v_mov_b32 v{O1+9}, v{M1}
s_cmp_eq_u32 s52, 0
s_cbranch_scc1 P2_X0
ds_write_b128 v14, {vr(O0,4)}
ds_write_b128 v14, {vr(O0+4,4)} offset:1024
ds_write_b64 v{T+2}, {vr(O0+8,2)}
""")
    for i in range(5): a(f"v_mov_b64 {vr(O0+2*i,2)}, {vr(O1+2*i,2)}")
    for i in range(2): a(f"v_mov_b64 {vr(Q0+2*i,2)}, {vr(Q1+2*i,2)}")
    a(f"""
s_branch P2_X1
P2_X0:
ds_write_b128 v14, {vr(O1,4)}
ds_write_b128 v14, {vr(O1+4,4)} offset:1024
ds_write_b64 v{T+2}, {vr(O1+8,2)}
P2_X1:
s_lshl_b32 s55, s48, 1
s_add_u32 s55, s55, s52
s_lshl_b32 s55, s55, 5
s_add_u32 s55, s55, s53
s_lshl_b32 s56, s55, 10
s_add_u32 s56, s56, {WS_OF:#x}
s_lshl_b32 s66, s48, {3+FSH}
s_add_u32 s66, s66, {WS_F2:#x}
s_lshl_b32 s55, s49, {FSH}
s_add_u32 s55, s55, s66
s_waitcnt lgkmcnt(0)
s_barrier
ds_read_b64 {vr(S0+8,2)}, v{T+3}
ds_read_b128 {vr(S0,4)}, v15
ds_read_b128 {vr(S0+4,4)}, v15 offset:1024
s_mov_b32 s68, 0
s_waitcnt lgkmcnt(2)
v_min_f32 v{T+4}, v{O0+9}, v{S0+9}
v_sub_f32 v{T+5}, v{T+4}, v{O0+9}
v_sub_f32 v{T+6}, v{T+4}, v{S0+9}
v_exp_f32 v{T+5}, v{T+5}
v_exp_f32 v{T+6}, v{T+6}
v_add_f32 v{T+7}, v{O0+8}, v{S0+8}
v_mul_f32 v{O0+8}, v{O0+8}, v{T+5}
v_cmp_ngt_f32 vcc, {f32bits(2.0**40):#x}, v{T+7}
v_fmac_f32 v{O0+8}, v{S0+8}, v{T+6}
v_rcp_f32 v{T+2}, v{O0+8}
s_mov_b64 s[64:65], vcc
v_mul_f32 v{T+5}, v{T+5}, v{T+2}
v_mul_f32 v{T+6}, v{T+6}, v{T+2}
s_waitcnt lgkmcnt(0)
""")
    for i in range(8): a(f"v_mul_f32 v{O0+i}, v{O0+i}, v{T+5}")
    for i in range(8): a(f"v_fmac_f32 v{O0+i}, v{S0+i}, v{T+6}")
    a(f"""
v_add_f32 v{T+3}, |v{O0}|, |v{O0+1}|
v_add_f32 v{T+4}, |v{O0+2}|, |v{O0+3}|
v_add_f32 v{T+5}, |v{O0+4}|, |v{O0+5}|
v_add_f32 v{T+6}, |v{O0+6}|, |v{O0+7}|
v_add_f32 v{T+3}, v{T+3}, v{T+4}
v_add_f32 v{T+5}, v{T+5}, v{T+6}
v_add_f32 v{T+3}, v{T+3}, v{T+5}
v_cmp_ngt_f32 vcc, 0x7f800000, v{T+3}
s_or_b64 vcc, vcc, s[64:65]
s_cbranch_vccnz P2_FALLBACK
P2_STORE:
""")
    for i in range(4): a(f"v_cvt_pk_bf16_f32 v{S0+i}, v{O0+2*i}, v{O0+2*i+1}")
    a(f"""
buffer_store_dwordx4 {vr(S0,4)}, v3, s[32:35], s56 offen sc1
v_mov_b32 v{T+2}, s26
v_mov_b32 v{T+3}, 0
s_add_u32 s69, s30, s31
s_and_b32 s69, s69, 3
s_cmp_lt_u32 s27, 4
s_cbranch_scc1 P3_COMPUTE
s_and_b32 s70, s51, 1
s_lshl_b32 s71, s48, 1
s_add_u32 s71, s71, s70
v_and_b32 v4, 7, v2
v_lshlrev_b32 v4, {FSH}, v4
s_mov_b32 s68, {POLL_MAX}
s_lshl_b32 s71, s71, 15
s_lshr_b32 s67, s51, 1
s_lshl_b32 s67, s67, 12
s_add_u32 s71, s71, s67
s_add_u32 s71, s71, {WS_OF:#x}
s_lshl_b32 s70, s70, 13
s_add_u32 s70, s70, s67
s_waitcnt vmcnt(0)
s_barrier
""")
    stamp(a, 9)
    a(f"""
P3_POLL:
s_sleep {SL2}
buffer_load_dword v5, v4, s[32:35], s66 offen sc1
s_sub_u32 s68, s68, 1
s_cbranch_scc1 P3_POLLED
s_waitcnt vmcnt(0)
v_cmp_ne_u32 vcc, s26, v5
s_cbranch_vccnz P3_POLL
P3_POLLED:
""")
    stamp(a, 10)
    for n in range(4):
        a(f"""s_add_u32 s64, s69, {n}
s_and_b32 s64, s64, 3
s_lshl_b32 s65, s64, 14
s_add_u32 s65, s65, s70
s_add_u32 m0, s65, {L_OF:#x}
s_lshl_b32 s64, s64, 13
s_add_u32 s64, s64, s71""")
        for i in range(4): a(f"buffer_load_dwordx4 v3, s[32:35], s64 offen offset:{i*1024} sc1 lds")
    for n in range(4): a(f"s_waitcnt vmcnt({12-4*n})\ns_barrier")
    endpgm(a)
    ACC3 = 64; X = 80; Y = 88; FR = 16; T3 = 104; B = 48
    a(f"""
P3_COMPUTE:
s_and_b32 s70, s27, 1
s_lshr_b32 s71, s27, 1
v_lshrrev_b32 v4, 5, v2
v_and_b32 v5, 31, v2
s_lshl_b32 s66, s48, 6
s_lshl_b32 s67, s70, 5
s_add_u32 s66, s66, s67
v_add_u32 v12, s66, v5
s_lshl_b32 s67, s49, 6
s_lshl_b32 s60, s71, 5
s_add_u32 s67, s67, s60
v_lshl_add_u32 v13, v4, 4, s67
v_lshlrev_b32 v14, 10, v12
v_lshl_add_u32 v14, v13, 1, v14
v_lshlrev_b32 v15, 2, v12
v_lshlrev_b32 v13, 2, v13
v_mov_b32 v6, {L_MISC:#x}
ds_read_b32 v{T3}, v6
""")
    srd(a, 40, 4, 0x200000)
    srd(a, 44, 22, 0x200000)
    a(f"""
s_mov_b32 s60, {WS_G:#x}
s_waitcnt vmcnt(0)
s_barrier
s_cmp_lg_u32 s27, 0
s_cbranch_scc1 P3_NOF2
s_mov_b64 exec, 1
buffer_store_dword v{T+2}, v{T+3}, s[32:35], s55 offen sc1
s_mov_b64 exec, -1
P3_NOF2:
""")
    stamp(a, 9)
    a(f"""
buffer_load_dword v{T3+1}, v15, s[32:35], s60 offen sc1
buffer_load_dwordx4 {vr(X,4)}, v14, s[40:43], 0 offen
buffer_load_dwordx4 {vr(X+4,4)}, v14, s[40:43], 0 offen offset:16
s_lshl_b32 s66, s70, 13
s_add_u32 s66, s66, {L_OF:#x}
v_add_u32 v10, s66, v3
v_bfe_u32 v6, v2, 2, 2
v_lshl_add_u32 v7, v4, 2, v6
v_lshlrev_b32 v7, 7, v7
v_lshrrev_b32 v6, 1, v6
v_xor_b32 v6, s71, v6
v_lshl_add_u32 v7, v6, 6, v7
v_and_b32 v6, 1, v2
v_lshl_add_u32 v7, v6, 5, v7
v_bfe_u32 v6, v2, 4, 1
v_lshl_add_u32 v7, v6, 4, v7
v_bfe_u32 v6, v2, 1, 1
v_lshl_add_u32 v11, v6, 3, v7
""")
    for i in range(8): a(f"v_mov_b64 {vr(ACC3+2*i,2)}, 0")
    a(f"""
s_waitcnt lgkmcnt(0)
v_and_b32 v{T3+2}, 0x7ff, v{T3}
v_sub_u32 v{T3+2}, 0x7ff, v{T3+2}
v_cmp_eq_u32 s[76:77], v{T3+2}, v12
v_and_b32 v{T3}, 0xffff0000, v{T3}
v_ashrrev_i32 v{T3+3}, 31, v{T3}
v_not_b32 v{T3+3}, v{T3+3}
v_or_b32 v{T3+3}, 0x80000000, v{T3+3}
v_xor_b32 v{T3}, v{T3}, v{T3+3}
v_and_b32 v{T3}, 0xffff0000, v{T3}
v_mul_f32 v{T3}, {f32bits(-LOG2E):#x}, v{T3}
v_exp_f32 v{T3}, v{T3}
s_waitcnt vmcnt(0)
v_sub_f32 v{T3+4}, 1.0, v{T3+1}
v_add_f32 v{T3}, 1.0, v{T3}
v_rcp_f32 v{T3}, v{T3}
""")
    for i in range(8):
        a(f"v_lshlrev_b32 v{B+2*i}, 16, v{X+i}\nv_and_b32 v{B+2*i+1}, 0xffff0000, v{X+i}")
    a(f"""
s_cmp_eq_u64 s[76:77], 0
s_cbranch_scc1 P3_NOSEL
s_mov_b32 s60, {WS_F3:#x}
s_mov_b32 s68, {POLL_MAX}
v_mul_u32_u24 v6, 12, v2
P3_POLL3:
buffer_load_dwordx4 {vr(Y,4)}, v3, s[32:35], s60 offen sc1
buffer_load_dwordx3 {vr(Y+4,3)}, v6, s[32:35], s60 offen offset:1024 sc1
s_sub_u32 s68, s68, 1
s_cbranch_scc1 P3_POLLED3
s_waitcnt vmcnt(0)
v_cmp_ne_u32 vcc, s26, v{Y}
""")
    for i in range(1, 7): a(f"v_cmp_ne_u32 s[64:65], s26, v{Y+i}\ns_or_b64 vcc, vcc, s[64:65]")
    a(f"""
s_cbranch_vccnz P3_POLL3
P3_POLLED3:
s_mov_b32 s60, {WS_Y:#x}
v_lshl_add_u32 v6, v5, 11, v13
""")
    for i in range(4): a(f"buffer_load_dwordx4 {vr(Y+4*i,4)}, v6, s[32:35], s60 offen offset:{16*i} sc1")
    a("s_waitcnt vmcnt(0)")
    for pat in ("row_ror:8", "row_ror:4", "row_ror:2", "row_ror:1"):
        for i in range(16): a(f"v_add_f32_dpp v{Y+i}, v{Y+i}, v{Y+i} {pat} row_mask:0xf bank_mask:0xf")
    for i in range(16): a(f"v_mov_b32 v{FR+i}, v{Y+i}")
    for i in range(16): a(f"v_permlane16_swap_b32 v{FR+i}, v{Y+i}")
    for i in range(16): a(f"v_add_f32 v{Y+i}, v{Y+i}, v{FR+i}")
    a("s_mov_b64 exec, s[76:77]")
    for i in range(16): a(f"v_fmac_f32 v{B+i}, v{Y+i}, v{T3}")
    a("s_mov_b64 exec, -1\nP3_NOSEL:")
    for i in range(16): a(f"v_mul_f32 v{B+i}, v{B+i}, v{T3+4}")
    a(f"""
s_add_u32 s66, s69, 4
P3_LOOP:
s_and_b32 s60, s69, 3
s_lshl_b32 s60, s60, 14
v_add_u32 v8, s60, v10
v_add_u32 v9, s60, v11
s_add_u32 s69, s69, 1
s_barrier
""")
    def reads3(hh):
        b = FR + 8*(hh % 4)
        a(f"ds_read_b128 {vr(b,4)}, v8 offset:{hh*1024}")
        a(f"ds_read_b64_tr_b16 {vr(b+4,2)}, v9 offset:{hh*2048}")
        a(f"ds_read_b64_tr_b16 {vr(b+6,2)}, v9 offset:{hh*2048+1024}")
    for hh in range(4): reads3(hh)
    for hh in range(8):
        b = FR + 8*(hh % 4)
        a(f"s_waitcnt lgkmcnt({3*min(3, 7-hh)})")
        a(f"v_mfma_f32_32x32x16_bf16 {vr(ACC3,16)}, {vr(b+4,4)}, {vr(b,4)}, {vr(ACC3,16)}")
        if hh + 4 < 8: reads3(hh+4)
    a(f"""
s_cmp_lg_u32 s69, s66
s_cbranch_scc1 P3_LOOP
s_nop 10
""")
    stamp(a, 10)
    for i in range(16): a(f"v_fmac_f32 v{B+i}, v{ACC3+i}, v{T3+1}")
    for i in range(8): a(f"v_cvt_pk_bf16_f32 v{X+i}, v{B+2*i}, v{B+2*i+1}")
    a(f"""
buffer_store_dwordx4 {vr(X,4)}, v14, s[44:47], 0 offen
buffer_store_dwordx4 {vr(X+4,4)}, v14, s[44:47], 0 offen offset:16
s_or_b32 s64, s2, s27
s_cbranch_scc1 L_END
s_mov_b32 s64, {WS_E:#x}
s_mov_b64 exec, 1
buffer_store_dword v{T+2}, v{T+3}, s[32:35], s64 offen sc1
L_END:
""")
    endpgm(a)
    a("L_EXIT:\ns_endpgm")
    A = T+4; R = T+8; H = T+44
    assert T+76 <= FS[0]
    def flagstore(ret, addr_lines):
        a(f"{addr_lines}\nv_mov_b32 v{T+2}, s26\nv_mov_b32 v{T+3}, 0\ns_waitcnt vmcnt(12)\ns_mov_b64 exec, 1")
        a(f"buffer_store_dword v{T+2}, v{T+3}, s[32:35], s65 offen sc1\ns_mov_b64 exec, -1\ns_branch {ret}")
    def cntwait(lab):
        a(f"""v_mov_b32 v{A}, {L_MISC+4:#x}
s_mov_b32 s79, {POLL_MAX}
{lab}:
ds_read_b32 v{A+1}, v{A}
s_sub_u32 s79, s79, 1
s_cbranch_scc1 {lab}OK
s_waitcnt lgkmcnt(0)
v_cmp_ne_u32 vcc, 4, v{A+1}
s_cbranch_vccz {lab}OK
s_sleep 2
s_branch {lab}
{lab}OK:""")
    a(f"""
FW_LD:
s_mov_b32 s79, {POLL_MAX}
s_mov_b32 s65, {WS_KG:#x}
buffer_load_dwordx4 {vr(KG,4)}, v3, s[32:35], s65 offen sc1
buffer_load_dwordx4 {vr(KG+4,4)}, v3, s[32:35], s65 offen offset:1024 sc1
s_branch FW_LD_RET
FW_KEYRE:
s_mov_b32 s65, {WS_KG:#x}
buffer_load_dwordx4 {vr(KG,4)}, v3, s[32:35], s65 offen sc1
buffer_load_dwordx4 {vr(KG+4,4)}, v3, s[32:35], s65 offen offset:1024 sc1
s_waitcnt vmcnt(0)
FW_KEYS:
s_waitcnt vmcnt(12)
v_cmp_ne_u32 vcc, s26, v{KG+1}
v_cmp_ne_u32 s[66:67], s26, v{KG+3}
s_or_b64 vcc, vcc, s[66:67]
v_cmp_ne_u32 s[66:67], s26, v{KG+5}
s_or_b64 vcc, vcc, s[66:67]
v_cmp_ne_u32 s[66:67], s26, v{KG+7}
s_or_b64 vcc, vcc, s[66:67]
s_sub_u32 s79, s79, 1
s_cbranch_scc1 FW_KEYOK
s_cbranch_vccnz FW_KEYRE
FW_KEYOK:
v_max3_u32 v{KG}, v{KG}, v{KG+2}, v{KG+4}
v_max_u32 v{KG}, v{KG}, v{KG+6}
""")
    umax_reduce64(a, KG, KG+1)
    srd(a, XS_SRD, 4, 0x200000)
    XF = T+68
    a(f"""
v_readfirstlane_b32 s65, v{KG}
v_mov_b32 v{KG+1}, {L_MISC:#x}
ds_write_b32 v{KG+1}, v{KG}
v_lshrrev_b32 v{A}, 4, v2
v_lshlrev_b32 v{A}, 4, v{A}
s_and_b32 s65, s65, 0x7ff
s_sub_u32 s65, 0x7ff, s65
s_lshl_b32 s65, s65, 10
s_lshl_b32 s66, s28, 7
s_add_u32 s65, s65, s66
buffer_load_dwordx4 {vr(XF,4)}, v{A}, s[{XS_SRD}:{XS_SRD+3}], s65 offen
buffer_load_dwordx4 {vr(XF+4,4)}, v{A}, s[{XS_SRD}:{XS_SRD+3}], s65 offen offset:64
s_branch FW_KEYS_RET
FW_S1:
""")
    cntwait("FW_C1")
    a(f"""
v_lshrrev_b32 v{A}, 4, v2
v_bfe_u32 v{A+1}, v2, 2, 2
v_lshl_add_u32 v{A}, v{A}, 3, v{A+1}
v_lshlrev_b32 v{A}, 7, v{A}
v_and_b32 v{A+2}, 3, v2
v_lshl_add_u32 v{A}, v{A+2}, 3, v{A}
v_lshrrev_b32 v{A+1}, 1, v{A+1}
v_lshl_add_u32 v{A}, v{A+1}, 6, v{A}
v_add_u32 v{A}, {L_FG:#x}, v{A}
v_xor_b32 v{A+1}, 64, v{A}
s_waitcnt vmcnt(12)
""")
    AC = T+36
    for m in range(2):
        for ks in range(2):
            for q in range(4):
                ad = A + (q >> 1)
                for jj in range(2):
                    a(f"ds_read_b64_tr_b16 {vr(R+4*q+2*jj,2)}, v{ad} offset:{m*0x2000 + ks*4096 + jj*512 + (q&1)*32}")
            for q in range(4):
                acc = vr(AC + 4*(m*4+q), 4)
                a(f"s_waitcnt lgkmcnt({6-2*q})")
                a(f"v_mfma_f32_16x16x32_bf16 {acc}, {vr(XF+4*ks,4)}, {vr(R+4*q,4)}, {acc if ks else 0}")
    a(f"""
v_lshlrev_b32 v{A}, 7, v2
s_lshl_b32 s65, s29, 13
s_lshl_b32 s66, s28, 4
s_add_u32 s65, s65, s66
s_add_u32 s65, s65, {WS_PRE:#x}
s_nop 3
v_mov_b32 v{AC+1}, v{AC+16}
v_mov_b32 v{AC+2}, s26
""")
    for lo, hi, q in ((0xffff0000, 0, 1), (0, 0xffff, 2), (0, 0xffff0000, 3)):
        a(f"s_mov_b32 exec_lo, {lo:#x}\ns_mov_b32 exec_hi, {hi:#x}\nv_mov_b32 v{AC}, v{AC+4*q}\nv_mov_b32 v{AC+1}, v{AC+16+4*q}")
    G = T+40
    HT = L_XS
    a(f"""
s_mov_b64 exec, -1
buffer_store_dwordx4 {vr(AC,4)}, v{A}, s[32:35], s65 offen sc1
s_branch FW_S1_RET
FW_S2A:
s_mov_b32 s79, {POLL_MAX}
s_lshl_b32 s65, s60, 10
s_add_u32 s65, s65, {WS_PRE:#x}
buffer_load_dwordx4 {vr(G,4)}, v3, s[32:35], s65 offen sc1
s_lshl_b32 s66, s27, 8
s_add_u32 s66, s66, {HT - 6*256:#x}
v_lshl_add_u32 v{A}, v2, 2, s66
v_mov_b32 v{A+1}, 0
ds_write_b32 v{A}, v{A+1}
s_branch FW_S2A_RET
FW_S2RE:
s_sleep 8
s_lshl_b32 s65, s60, 10
s_add_u32 s65, s65, {WS_PRE:#x}
buffer_load_dwordx4 {vr(G,4)}, v3, s[32:35], s65 offen sc1
s_waitcnt vmcnt(0)
FW_S2:
s_waitcnt vmcnt(12)
v_cmp_ne_u32 vcc, s26, v{G+2}
s_sub_u32 s79, s79, 1
s_cbranch_scc1 FW_S2OK
s_cbranch_vccnz FW_S2RE
FW_S2OK:
v_bfe_u32 v{A+2}, v2, 2, 3
v_lshlrev_b32 v{A+2}, 9, v{A+2}
v_and_b32 v{A+3}, 3, v2
v_lshl_add_u32 v{A+2}, v{A+3}, 3, v{A+2}
v_add_u32 v{A+2}, s68, v{A+2}
""")
    WF = R; YA = T+56
    pats = ("quad_perm:[1,0,3,2]", "quad_perm:[2,3,0,1]", "row_half_mirror")
    for k, pat in enumerate(pats):
        for i in range(2): a(f"v_add_f32_dpp v{G+i}, v{G+i}, v{G+i} {pat} row_mask:0xf bank_mask:0xf")
        for q in range(4*k, 4*k+4): a(f"ds_read_b64_tr_b16 {vr(WF+2*q,2)}, v{A+2} offset:{q*32}")
    a(f"""
v_mul_f32 v{G+2}, {f32bits(-LOG2E):#x}, v{G}
v_exp_f32 v{G+2}, v{G+2}
v_mul_f32 v{G}, v{G}, v{G+1}
s_lshl_b32 s66, s27, 8
s_add_u32 s66, s66, {HT - 6*256 + 96:#x}
v_add_f32 v{G+2}, 1.0, v{G+2}
v_rcp_f32 v{G+2}, v{G+2}
v_lshrrev_b32 v{A}, 3, v2
v_lshl_add_u32 v{A}, v{A}, 1, s66
v_mul_f32 v{G}, v{G}, v{G+2}
v_cvt_pk_bf16_f32 v{G}, v{G}, v{G}
ds_write_b16 v{A}, v{G}
v_lshrrev_b32 v{A}, 4, v2
v_lshl_add_u32 v{A}, v{A}, 3, s66
v_bfe_u32 v{A+1}, v2, 2, 2
v_lshlrev_b32 v{A+1}, 5, v{A+1}
v_sub_u32 v{A}, v{A}, v{A+1}
s_waitcnt lgkmcnt(4)
""")
    for q in range(12, 16): a(f"ds_read_b64_tr_b16 {vr(WF+2*q,2)}, v{A+2} offset:{q*32}")
    for j in range(4): a(f"ds_read_b64 {vr(H+2*j,2)}, v{A} offset:{j*32}")
    a(f"""
v_lshlrev_b32 v{A+1}, 2, v2
s_and_b32 s65, s60, 31
s_lshl_b32 s65, s65, 11
s_and_b32 s66, s27, 1
s_lshl_b32 s66, s66, 10
s_add_u32 s65, s65, s66
s_add_u32 s65, s65, {WS_Y:#x}
s_waitcnt lgkmcnt(0)""")
    for j in range(4):
        for Qn in range(4):
            acc = vr(YA + 4*Qn, 4)
            a(f"v_mfma_f32_16x16x16_bf16 {acc}, {vr(H+2*j,2)}, {vr(WF+2*(Qn*4+j),2)}, {acc if j else 0}")
    a("s_nop 7")
    for Qn in range(4):
        a(f"buffer_atomic_add_f32 v{YA+4*Qn}, v{A+1}, s[32:35], s65 offen offset:{Qn*256}")
    a("s_branch FW_S2_RET\nFW_F3:")
    flagstore("FW_F3_RET", f"s_lshl_b32 s65, s60, 1\ns_and_b32 s66, s27, 1\ns_add_u32 s65, s65, s66\ns_lshl_b32 s65, s65, 2\ns_add_u32 s65, s65, {WS_F3:#x}")
    a(f"""
P2_FALLBACK:
s_mov_b32 s64, s54
s_add_u32 s65, s54, 0x20000
v_mov_b32 v{T+2}, 0xff800000
FB_MAX:
buffer_load_dwordx4 {vr(FA,4)}, v3, s[32:35], s64 offen sc1
s_add_u32 s64, s64, 2048
s_waitcnt vmcnt(0)
v_mfma_f32_32x32x16_bf16 {vr(S0,16)}, {vr(FA,4)}, {vr(Q0,4)}, 0
s_nop 15
""")
    for i in range(8): a(f"v_max3_f32 v{T+2}, v{T+2}, v{S0+2*i}, v{S0+2*i+1}")
    a(f"""
s_cmp_lt_u32 s64, s65
s_cbranch_scc1 FB_MAX
v_mov_b32 v{T+3}, v{T+2}
s_nop 1
v_permlane32_swap_b32 v{T+3}, v{T+2}
s_nop 1
v_max_f32 v{T+2}, v{T+2}, v{T+3}
""")
    for i in range(16): a(f"v_mul_f32 v{M0+i}, -1.0, v{T+2}")
    for i in range(8): a(f"v_mov_b64 {vr(O0+2*i,2)}, 0")
    a(f"""
s_mov_b32 s64, s54
FB_ACC:
buffer_load_dwordx4 {vr(FA,4)}, v3, s[32:35], s64 offen sc1
s_mov_b64 exec, s[58:59]
buffer_load_dwordx4 {vr(FA+4,4)}, v3, s[32:35], s64 offen offset:1024 sc1
buffer_load_dwordx4 {vr(FA+8,4)}, v3, s[32:35], s64 offen offset:1280 sc1
s_mov_b64 exec, -1
s_add_u32 s64, s64, 2048
s_waitcnt vmcnt(0)
{qk(S0, FA, Q0, M0)}
s_nop 15
""")
    for i in range(16): a(f"v_exp_f32 v{S0+i}, v{S0+i}")
    a(f"""
s_nop 1
{smf(O0, FA+4, S0)}
{smf(O0, FA+8, S0+8)}
s_cmp_lt_u32 s64, s65
s_cbranch_scc1 FB_ACC
s_nop 15
v_rcp_f32 v{T+2}, v{O0+8}
s_nop 0
""")
    for i in range(8): a(f"v_mul_f32 v{O0+i}, v{O0+i}, v{T+2}")
    a("s_branch P2_STORE")
    return name

def main():
    body = Asm()
    name = gen(body)
    vg, sg = (256, 100)
    txt = body.text()
    txt = txt.replace("    s_mov_b32 s54, 1\n    s_waitcnt lgkmcnt(0)\n    s_cselect_b32 s36", "    s_mov_b32 s54, 1\n    s_cmp_lt_u32 s51, 2\n    s_waitcnt lgkmcnt(0)\n    s_cselect_b32 s36")
    out = f"""; generated by gen/gen4.py (own generator script)
; @launch grid=(256,1,1) block=(512,1,1) lds={LDS_BYTES}
.amdgcn_target "amdgcn-amd-amdhsa--gfx950"
.text
""" + txt + f""".section .rodata,"a"
.p2align 6
.amdhsa_kernel {name}
  .amdhsa_next_free_vgpr {vg}
  .amdhsa_next_free_sgpr {sg}
  .amdhsa_accum_offset {vg}
  .amdhsa_group_segment_fixed_size 0
  .amdhsa_kernarg_size 96
  .amdhsa_user_sgpr_count 2
  .amdhsa_user_sgpr_kernarg_segment_ptr 1
  .amdhsa_system_sgpr_workgroup_id_x 1
.end_amdhsa_kernel
"""
    if EXP & 1:
        i0 = out.index("P2_PRE:"); i1 = out.index("P2_X0:")
        out = out[:i0] + out[i0:i1].replace(" sc1", "") + out[i1:]
    if EXP & 2:
        out = "\n".join(("    buffer_load_dwordx4 v3, s[44:47], s62 offen lds" if ("s[36:39], s61 offen lds" in l or "s[40:43], s61 offen lds" in l) else l) for l in out.split("\n"))
    if EXP & 4:
        i0 = out.index("P2_BQ:"); i1 = out.index("P2_X0:")
        out = out[:i0] + "\n".join(l for l in out[i0:i1].split("\n") if "s_cbranch_scc1 FW_" not in l) + "\n" + out[i1:]
        out = out.replace("    s_cmp_eq_u64 s[76:77], 0\n    s_cbranch_scc1 P3_NOSEL", "    s_branch P3_NOSEL")
    path = sys.argv[1] if len(sys.argv) > 1 else f"cdna_kernels/{NAME}.s"
    open(path, "w").write(out)
main()
```

```python
import math, struct, sys, os

NAME = "gated_mix__mha_block__moe_arch_mod__prompt"
E = lambda k, d: int(os.environ.get(k, str(d)))
STAMP = bool(os.environ.get("STAMP"))
EXP = E("EXP", 0)

WS_KV = 0x200000
WS_OF = 0x600000
WS_G  = 0x800000
WS_Y  = 0x860000
WS_KG = 0x816000
WS_F3 = 0x815000
WS_E  = 0x818000
WS_F1 = 0x820000
WS_PRE = 0x880000
WS_F2 = 0x840000
FSH = E("FSH", 5)
WS_SIZE = 0x10000000
POLL_MAX = 1 << 18

L_WO = 0x00000; L_OF = 0x10000
L_FG = 0x10000; L_FD = 0x14000; L_XS = 0x16000
L_OX = 0x20000; L_LS = 0x24000; L_Q = 0x25000; L_MISC = 0x27000
LDS_BYTES = 0x28000

def f32bits(x): return struct.unpack("<I", struct.pack("<f", x))[0]
LOG2E = 1.4426950408889634
QSCALE = 0.25 * LOG2E

class Asm:
    def __init__(self): self.l = []
    def __call__(self, s):
        for line in s.strip("\n").split("\n"):
            line = line.strip()
            if not line: continue
            if line.endswith(":") : self.l.append(line)
            else: self.l.append("    " + line)
    def text(self): return "\n".join(self.l) + "\n"

def vr(a, n): return f"v[{a}:{a+n-1}]"
def srd(a, d, lo, nbytes):
    a(f"s_mov_b32 s{d}, s{lo}\ns_mov_b32 s{d+1}, s{lo+1}\ns_mov_b32 s{d+2}, {nbytes:#x}\ns_mov_b32 s{d+3}, 0x00020000")

NST = 10
LEAK = os.environ.get('LEAK', '').split(',') if os.environ.get('LEAK') else None
XS_SRD = 96
MAP = E("MAP", 0); ROT = E("ROT", 0)
ROTI = {0: "s_mov_b32 s55, 0", 1: "s_lshl_b32 s55, s31, 14", 2: "s_lshl_b32 s55, s48, 12", 3: "s_lshl_b32 s55, s31, 13"}[ROT]
SL1 = E("SL1", 4); SL2 = E("SL2", 4); PQ = E("PQ", 5); PS = E("PS", 11); NS = E("NS", 5); LA = E("LA", 5); FLAGAT = E("FLAGAT", 14)
def stamp(a, slot):
    if not STAMP: return
    a(f"s_memrealtime s[82:83]\ns_waitcnt lgkmcnt(0)\ns_mov_b32 s{86+slot if slot < 10 else 85}, s82")
def stampc(a, slot):
    if not STAMP: return
    a(f"s_memtime s[82:83]\ns_waitcnt lgkmcnt(0)\ns_sub_u32 s{86+slot}, s82, s{86+slot}")
def endpgm(a):
    if STAMP:
        a(f"""s_waitcnt vmcnt(0)
s_memrealtime s[82:83]
s_waitcnt lgkmcnt(0)
s_mov_b64 exec, 1
s_lshl_b32 s79, s2, 3
s_add_u32 s79, s79, s27
s_lshl_b32 s79, s79, 6
s_add_u32 s79, s79, 0x1000000
v_mov_b32 v249, s79
v_mov_b32 v232, s80
v_mov_b32 v233, s82""")
        for i in range(NST): a(f"v_mov_b32 v{234+i}, s{86+i}")
        a("v_mov_b32 v244, s85\nv_mov_b32 v245, 0\nv_mov_b32 v246, 0\nv_mov_b32 v247, 0")
        for i in range(4): a(f"global_store_dwordx4 v249, {vr(232+4*i,4)}, s[24:25] offset:{16*i}")
        if LEAK:
            lo, hi = LEAK
            reg = lambda k: {"start": "s80", "end": "s82", "10": "s85"}.get(k, f"s{86+int(k)}" if k.isdigit() else None)
            lab = f"L_LK{len(a.l)}"
            a(f"s_cmp_lg_u32 s2, 0\ns_cbranch_scc1 {lab}\ns_cmp_lg_u32 s27, 0\ns_cbranch_scc1 {lab}")
            a(f"s_sub_u32 s4, {reg(hi)}, {reg(lo)}\ns_lshl_b32 s4, s4, 2\n{lab}_w:\ns_memrealtime s[6:7]\ns_waitcnt lgkmcnt(0)\ns_sub_u32 s5, s6, s82\ns_cmp_lt_u32 s5, s4\ns_cbranch_scc1 {lab}_w\n{lab}:")
    a("s_endpgm")

def umax_reduce64(a, v, t):
    for pat in ("quad_perm:[1,0,3,2]", "quad_perm:[2,3,0,1]", "row_half_mirror", "row_mirror"):
        a(f"s_nop 1\nv_max_u32_dpp v{v}, v{v}, v{v} {pat} row_mask:0xf bank_mask:0xf")
    for sw in ("v_permlane16_swap_b32", "v_permlane32_swap_b32"):
        a(f"v_mov_b32 v{t}, v{v}\ns_nop 1\n{sw} v{t}, v{v}\ns_nop 1\nv_max_u32 v{v}, v{v}, v{t}")

SEC_A, SEC_B, SEC_C = 1, 2, 0

def gen(a):
    name = NAME + "_kernel"
    a.l.append(f".globl {name}\n.p2align 8\n.type {name},@function\n{name}:")
    if STAMP:
        a("s_memrealtime s[80:81]")
        for i in range(NST): a(f"s_mov_b32 s{86+i}, 0")
    a("""
s_cmp_ge_u32 s2, 256
s_cbranch_scc1 L_EXIT
s_load_dwordx4 s[4:7], s[0:1], 0
s_load_dwordx2 s[24:25], s[0:1], 88
s_load_dwordx2 s[8:9], s[0:1], 16
s_load_dwordx8 s[12:19], s[0:1], 32
s_load_dwordx4 s[20:23], s[0:1], 64
v_lshrrev_b32 v1, 6, v0
v_and_b32 v2, 63, v0
s_and_b32 s28, s2, 7
v_readfirstlane_b32 s27, v1
s_lshr_b32 s29, s2, 3
s_lshr_b32 s48, s28, 1
s_lshl_b32 s48, s48, 3
s_lshr_b32 s31, s29, 2
s_add_u32 s48, s48, s31
s_and_b32 s30, s29, 3
s_and_b32 s49, s28, 1
s_lshl_b32 s49, s49, 2
s_add_u32 s49, s49, s30
s_lshl_b32 s50, s30, 1
s_add_u32 s50, s50, s31
s_and_b32 s50, s50, 7
v_lshlrev_b32 v3, 4, v2
""")
    if MAP == 1:
        a("s_mov_b32 s48, s29\ns_mov_b32 s49, s28\ns_and_b32 s50, s29, 7")
    if MAP == 2:
        a("""s_lshr_b32 s48, s28, 2
s_lshl_b32 s48, s48, 4
s_lshr_b32 s50, s29, 1
s_add_u32 s48, s48, s50
s_and_b32 s49, s28, 3
s_lshl_b32 s49, s49, 1
s_and_b32 s51, s29, 1
s_add_u32 s49, s49, s51
s_lshl_b32 s51, s51, 2
s_add_u32 s50, s50, s51
s_and_b32 s50, s50, 7""")
    a("""
s_cmp_lt_u32 s27, 4
s_cbranch_scc1 P1_COMPUTE
""")
    a(f"""
s_sub_u32 s51, s27, 4
s_and_b32 s52, s51, 1
s_lshl_b32 s57, s48, 16
s_lshl_b32 s58, s52, 15
s_add_u32 s57, s57, s58
s_mul_i32 s58, s52, {32*3072}
s_lshl_b32 s59, s49, 7
s_add_u32 s58, s58, s59
v_lshrrev_b32 v4, 3, v2
v_and_b32 v5, 7, v2
v_lshrrev_b32 v6, 1, v4
v_xor_b32 v6, v5, v6
v_lshlrev_b32 v6, 4, v6
v_lshl_add_u32 v6, v4, 10, v6
v_add_u32 v8, s57, v6
v_xor_b32 v9, 64, v8
v_lshlrev_b32 v7, 1, v4
v_and_b32 v7, 4, v7
v_xor_b32 v5, v5, v7
v_lshlrev_b32 v5, 4, v5
v_mul_u32_u24 v4, 3072, v4
v_add3_u32 v10, v4, v5, s58
s_cmp_lt_u32 s51, 2
s_cselect_b64 vcc, -1, 0
s_mov_b32 s56, 0x30000
s_cmovk_i32 s56, 128
s_mov_b32 s38, 0x180000
s_cmov_b32 s38, 0x200000
s_movk_i32 s60, {8*3072-1024}
s_cmovk_i32 s60, 7168
s_movk_i32 s59, {SEC_A*1024}
s_cmovk_i32 s59, 0
s_mov_b32 s39, 0x00020000
v_cndmask_b32 v8, v10, v8, vcc
v_cndmask_b32 v9, v10, v9, vcc
s_lshl_b32 s61, s51, 12
s_mov_b32 s62, 0
s_mov_b32 s53, s50
s_mov_b32 s65, {WS_E:#x}
s_mov_b32 s54, 1
s_waitcnt lgkmcnt(0)
s_cselect_b32 s36, s4, s6
s_cselect_b32 s37, s5, s7
s_load_dword s26, s[24:25], s65
P1_LD_LOOP:
s_cmp_lt_u32 s62, {LA}
s_cbranch_scc1 P1_LD_ISSUE
s_waitcnt vmcnt({4*(LA-1)}) lgkmcnt(0)
s_barrier
P1_LD_ISSUE:
s_and_b32 s64, s62, 7
s_lshl_b32 s64, s64, 14
s_add_u32 m0, s64, s61
s_and_b32 s63, s53, 7
s_mul_i32 s63, s63, s56
s_add_u32 s63, s63, s59
""")
    for i in range(4):
        a(f"buffer_load_dwordx4 v{8+(i&1)}, s[36:39], s63 offen offset:{i*1024} lds")
        if i != 3: a("s_add_u32 s63, s63, s60")
    a(f"""
s_add_u32 s53, s53, s54
s_add_u32 s62, s62, 1
s_cmp_eq_u32 s62, 8
s_cbranch_scc0 P1_LD_N8
s_mov_b32 s36, s6
s_mov_b32 s37, s7
s_mov_b32 s38, 0x180000
s_mov_b32 s56, 0x30000
s_movk_i32 s60, {8*3072-1024}
s_movk_i32 s59, {SEC_B*1024}
v_mov_b32 v8, v10
v_mov_b32 v9, v10
s_lshr_b32 s53, s51, 1
s_add_u32 s53, s53, s50
s_mov_b32 s54, 2
P1_LD_N8:
s_cmp_eq_u32 s62, 12
s_cmovk_i32 s59, {SEC_C*1024}
s_cmp_lt_u32 s62, 16
s_cbranch_scc1 P1_LD_LOOP
""")
    srd(a, 32, 24, WS_SIZE)
    for k in range(LA-1, 0, -1):
        a(f"s_waitcnt vmcnt({4*k})\ns_barrier")
    a("""
s_waitcnt vmcnt(0) lgkmcnt(0)
s_barrier
s_mul_i32 s26, s26, 0x9e3779b1
s_add_u32 s26, s26, 0x7f4a7c15
s_branch P2_SETUP
""")
    XR = 128; WB = 64; ACC = [32, 48]
    a(f"""
P1_COMPUTE:
""")
    if E("CPF", 0):
        a("""
s_getpc_b64 s[60:61]
L_PC:
s_lshl_b32 s62, s29, 2
s_add_u32 s62, s62, s27
s_lshl_b32 s62, s62, 8
s_min_u32 s62, s62, L_CODE_END - L_PC - 256
""")
    a(f"""
s_and_b32 s51, s27, 1
s_lshr_b32 s52, s27, 1
s_mov_b32 s65, {WS_E:#x}
v_mov_b32 v21, 0
v_lshrrev_b32 v4, 5, v2
v_and_b32 v5, 31, v2
v_bfe_u32 v6, v2, 1, 3
v_xor_b32 v6, v6, v4
v_lshlrev_b32 v6, 4, v6
s_lshl_b32 s53, s51, 12
v_lshl_add_u32 v6, v5, 7, v6
v_add_u32 v10, s53, v6
v_xor_b32 v11, 32, v10
v_xor_b32 v12, 64, v10
v_xor_b32 v13, 0x60, v10
v_bfe_u32 v6, v2, 2, 2
v_lshl_add_u32 v7, v4, 3, v6
v_lshlrev_b32 v7, 7, v7
v_lshrrev_b32 v6, 1, v6
v_xor_b32 v6, s52, v6
v_lshl_add_u32 v7, v6, 6, v7
v_bfe_u32 v6, v2, 4, 1
v_lshl_add_u32 v7, v6, 5, v7
v_and_b32 v6, 3, v2
v_lshl_add_u32 v14, v6, 3, v7
v_add_u32 v15, 0x10000, v14
v_add_u32 v16, 0x10000, v10
v_add_u32 v17, 0x10000, v11
v_add_u32 v18, 0x10000, v12
v_add_u32 v19, 0x10000, v13
s_waitcnt lgkmcnt(0)
""")
    if E("CPF", 0): a("s_load_dword s63, s[60:61], s62\ns_load_dword s63, s[60:61], s62 offset:128")
    srd(a, 32, 24, WS_SIZE)
    a("buffer_load_dword v21, v21, s[32:35], s65 offen")
    if E("WPF", 1):
        a("s_cmp_lt_u32 s27, 2\ns_cbranch_scc1 P1_NOPF")
        srd(a, 36, 6, 0x180000)
        a(f"""s_mul_i32 s53, s50, 0x30000
s_lshl_b32 s54, s49, 7
s_add_u32 s53, s53, s54
s_cmp_eq_u32 s27, 2
s_cselect_b32 s54, {SEC_B*1024}, {SEC_C*1024}
s_add_u32 s53, s53, s54
v_mul_u32_u24 v31, 3072, v2
buffer_load_dword v31, v31, s[36:39], s53 offen
P1_NOPF:""")
    a("s_cmp_lg_u32 s27, 0\ns_cbranch_scc1 P1_NORG")
    X = 128; WR = 160; WGT = 164; P = 168
    srd(a, 36, 4, 0x200000); srd(a, 40, 12, 1024); srd(a, 44, 20, 1024)
    a("""
s_lshl_b32 s66, s48, 3
s_add_u32 s66, s66, s49
s_lshl_b32 s53, s66, 13
s_add_u32 s54, s53, 4096
""")
    a(f"buffer_load_dwordx4 {vr(WR,4)}, v3, s[40:43], 0 offen")
    a(f"buffer_load_dwordx4 {vr(WGT,4)}, v3, s[44:47], 0 offen")
    for i in range(8):
        a(f"buffer_load_dwordx4 {vr(X+4*i,4)}, v3, s[36:39], s{53 if i < 4 else 54} offen offset:{(i%4)*1024}")
    for i in range(8): a(f"v_mov_b64 {vr(P+2*i,2)}, 0")
    a(f"""
v_mov_b32 v6, {L_MISC+4:#x}
ds_write_b32 v6, v{P}
v_and_b32 v6, 1, v2
v_cmp_eq_u32 vcc, 0, v6
v_and_b32 v6, 2, v2
v_cmp_eq_u32 s[56:57], 0, v6
v_and_b32 v24, 3, v2
v_bfe_u32 v7, v2, 4, 1
v_lshl_add_u32 v24, v7, 2, v24
s_lshl_b32 s53, s66, 3
v_add_u32 v24, s53, v24
s_lshl_b32 s55, s2, 8
s_add_u32 s55, s55, {WS_Y:#x}
v_lshlrev_b32 v7, 2, v2
s_waitcnt vmcnt(0)
buffer_store_dword v{P}, v7, s[32:35], s55 offen sc1
""")
    for k in range(4):
        for i in range(8):
            a(f"v_dot2c_f32_bf16 v{P+i}, v{X+4*i+k}, v{WR+k}")
            a(f"v_dot2c_f32_bf16 v{P+8+i}, v{X+4*i+k}, v{WGT+k}")
    a("s_nop 2")
    for i in range(8): a(f"v_permlane32_swap_b32 v{P+i}, v{P+8+i}")
    a("s_nop 1")
    for i in range(8): a(f"v_add_f32 v{P+i}, v{P+i}, v{P+8+i}")
    a("s_nop 1")
    for i in range(4): a(f"v_permlane16_swap_b32 v{P+i}, v{P+4+i}")
    a("s_nop 1")
    for i in range(4): a(f"v_add_f32 v{P+i}, v{P+i}, v{P+4+i}")
    for pat in ("row_ror:8", "row_ror:4", "row_ror:2", "row_ror:1"):
        for i in range(4): a(f"v_add_f32_dpp v{P+i}, v{P+i}, v{P+i} {pat} row_mask:0xf bank_mask:0xf")
    a(f"""
v_cndmask_b32 v{P}, v{P+1}, v{P}, vcc
v_cndmask_b32 v{P+2}, v{P+3}, v{P+2}, vcc
v_cndmask_b32 v{P}, v{P+2}, v{P}, s[56:57]
v_cvt_pk_bf16_f32 v{P}, v{P}, v{P}
v_and_b32 v{P}, 0xffff0000, v{P}
v_mul_f32 v25, {f32bits(-LOG2E):#x}, v{P}
v_exp_f32 v25, v25
v_ashrrev_i32 v26, 31, v{P}
v_or_b32 v26, 0x80000000, v26
v_add_f32 v25, 1.0, v25
v_rcp_f32 v25, v25
v_xor_b32 v26, v{P}, v26
v_and_b32 v26, 0xffff0000, v26
v_sub_u32 v7, 0x7ff, v24
v_or_b32 v26, v26, v7
v_cvt_pk_bf16_f32 v25, v25, v25
v_and_b32 v25, 0xffff0000, v25
v_lshlrev_b32 v24, 2, v24
s_mov_b32 s53, {WS_G:#x}
s_mov_b32 exec_lo, 0
buffer_store_dword v25, v24, s[32:35], s53 offen sc1
v_mov_b32 v26, 0
s_mov_b32 exec_lo, -1
""")
    umax_reduce64(a, 26, 27)
    a("P1_NORG:")
    a(f"""
s_lshl_b32 s53, s48, 1
s_add_u32 s53, s53, s51
s_lshl_b32 s54, s49, 2
s_lshl_b32 s55, s52, 1
s_add_u32 s54, s54, s55
s_lshl_b32 s59, s53, 11
s_lshl_b32 s57, s54, 17
s_add_u32 s59, s59, s57
s_add_u32 s59, s59, {WS_KV:#x}
s_add_u32 s60, s59, 0x20000
s_lshl_b32 s54, s49, 5
s_add_u32 s54, s54, s48
s_lshl_b32 s54, s54, {FSH}
s_add_u32 s54, s54, {WS_F1:#x}
s_mov_b32 s64, {f32bits(QSCALE):#x}
s_mov_b32 s65, {f32bits(QSCALE):#x}
v_and_b32 v6, 0x33, v2
v_and_b32 v7, 4, v2
v_lshl_or_b32 v6, v7, 1, v6
v_and_b32 v7, 8, v2
v_lshrrev_b32 v7, 1, v7
v_or_b32 v6, v6, v7
v_lshlrev_b32 v22, 4, v6
v_and_b32 v6, 0x2f, v2
v_lshlrev_b32 v6, 4, v6
v_bfe_u32 v7, v2, 4, 1
v_lshl_add_u32 v23, v7, 17, v6
s_lshl_b32 s56, s52, 12
s_lshl_b32 s57, s51, 10
s_add_u32 s56, s56, s57
s_add_u32 s56, s56, {L_Q:#x}
v_add_u32 v1, s56, v3
""")
    stamp(a, 0)
    NWB = 12
    steps = []
    for n in range(16):
        if n < 8:
            for s in range(4): steps.append((n, 0, 4*n+s, 0x2000 + s*2048))
        else:
            m = n & 3
            for s in range(8): steps.append((n, 1 if n < 12 else 2, 8*m+s, s*2048))
    def rd(idx):
        n, p, ks, wo = steps[idx]
        slot = n & 7; hi = slot >= 4; so = (slot & 3) * 0x4000
        wb = WB + 4*(idx % NWB)
        r = []
        if p == 0: r.append(f"ds_read_b128 {vr(XR+4*ks,4)}, v{(16 if hi else 10)+(ks&3)} offset:{so}")
        for jj in range(2): r.append(f"ds_read_b64_tr_b16 {vr(wb+2*jj,2)}, v{15 if hi else 14} offset:{so+wo+jj*512}")
        return r
    def mf(idx):
        n, p, ks, wo = steps[idx]
        wb = vr(WB + 4*(idx % NWB), 4); x = vr(XR+4*ks, 4); acc = vr(ACC[p & 1], 16)
        c = acc if ks else "0"
        return f"v_mfma_f32_32x32x16_bf16 {acc}, {x}, {wb}, {c}" if p == 1 else f"v_mfma_f32_32x32x16_bf16 {acc}, {wb}, {x}, {c}"
    PK = 112
    def epi(p):
        A_ = ACC[p & 1]
        if p == 2:
            for i in range(8): a(f"v_pk_mul_f32 {vr(A_+2*i,2)}, {vr(A_+2*i,2)}, s[64:65]")
        o = PK + (8 if p else 0)
        for i in range(8): a(f"v_cvt_pk_bf16_f32 v{o+i}, v{A_+2*i}, v{A_+1+2*i}")
        if p == 0:
            a(f"buffer_store_dwordx4 {vr(o,4)}, v22, s[32:35], s59 offen sc1\nbuffer_store_dwordx4 {vr(o+4,4)}, v22, s[32:35], s60 offen sc1")
        elif p == 1:
            a(f"buffer_store_dwordx4 {vr(o,4)}, v23, s[32:35], s59 offen offset:1024 sc1\nbuffer_store_dwordx4 {vr(o+4,4)}, v23, s[32:35], s59 offen offset:1280 sc1")
        else:
            a(f"ds_write_b128 v1, {vr(o,4)}\nds_write_b128 v1, {vr(o+4,4)} offset:2048")
    pend = []
    for n in range(16):
        idxs = [i for i, st in enumerate(steps) if st[0] == n]
        a("s_barrier")
        if n == 0: stamp(a, 1)
        if E("PST", 0) and n in (4, 8, 12): stamp(a, {4: 5, 8: 6, 12: 8}[n])
        if n == FLAGAT:
            a("""
s_cmp_lg_u32 s27, 0
s_cbranch_scc1 P1_NOKG
s_mov_b64 exec, 1
buffer_store_dword v27, v7, s[32:35], s54 offen sc1
buffer_store_dwordx2 v[26:27], v7, s[32:35], s53 offen sc1
s_mov_b64 exec, -1
P1_NOKG:
""")
            stamp(a, 3)
        reads = [rd(i) for i in idxs]
        flat = [x for r in reads for x in r]
        per = -(-len(flat) // max(1, len(pend))) if pend else len(flat)
        k = 0
        for pm in pend:
            a(mf(pm))
            for x in flat[k:k+per]: a(x)
            k += per
        for x in flat[k:]: a(x)
        half = len(idxs)//2 if n < 15 else len(idxs)
        nr = len(reads[0])
        for j in range(half):
            a(f"s_waitcnt lgkmcnt({min(15, nr*(len(idxs)-1-j))})")
            a(mf(idxs[j]))
        if n in (8, 12):
            epi(0 if n == 8 else 1)
        if n == FLAGAT - 1:
            a(f"""
s_waitcnt vmcnt(0)
v_readfirstlane_b32 s26, v21
v_mov_b32 v7, 0
s_nop 1
s_mul_i32 s26, s26, 0x9e3779b1
s_add_u32 s26, s26, 0x7f4a7c15
s_lshl_b32 s53, s66, 3
s_add_u32 s53, s53, {WS_KG:#x}
v_mov_b32 v27, s26
""")
        pend = idxs[half:]
        if n < 15: a("s_waitcnt lgkmcnt(0)")
    a("s_nop 11")
    epi(2)
    stamp(a, 2)
    Q0, Q1, S0, S1, O0, O1, M0, M1, T = 4, 8, 16, 32, 48, 64, 80, 96, 112
    FS = [192 - 12*NS + 12*i + 64 for i in range(NS)]
    FW = 3
    a(f"""
P2_SETUP:
s_and_b32 s51, s27, 3
s_lshr_b32 s52, s27, 2
s_lshl_b32 s53, s49, 2
s_add_u32 s53, s53, s51
s_lshl_b32 s54, s53, 17
s_add_u32 s54, s54, {WS_KV:#x}
s_lshl_b32 s57, s52, 16
{ROTI}
s_add_u32 s57, s57, s55
s_and_b32 s57, s57, 0x1ffff
v_mov_b32 v12, 0xdddddddd
v_and_b32 v14, 27, v2
v_cmp_eq_u32 vcc, 16, v14
v_mov_b32 v15, 0x3f803f80
s_mov_b32 s58, 0xffff
s_mov_b32 s59, 0xffff
v_cndmask_b32 v14, 0, v15, vcc
v_mov_b32 v15, v14
s_lshl_b32 s56, s51, 11
s_add_u32 s56, s56, {L_Q:#x}
v_add_u32 v13, s56, v3
""")
    for F in FS:
        for i in range(4): a(f"v_mov_b64 {vr(F+4+2*i,2)}, v[14:15]")
    vq = []
    def ld(t):
        F = FS[t % NS]; r = []
        if t % 2 == 0:
            r += ["s_add_u32 s64, s54, s57", "s_add_u32 s57, s57, 4096", "s_and_b32 s57, s57, 0x1ffff"]
        o = (t % 2) * 2048
        r += [f"buffer_load_dwordx4 {vr(F,4)}, v3, s[32:35], s64 offen offset:{o} sc1", "s_mov_b64 exec, s[58:59]",
              f"buffer_load_dwordx4 {vr(F+4,4)}, v3, s[32:35], s64 offen offset:{o+1024} sc1",
              f"buffer_load_dwordx4 {vr(F+8,4)}, v3, s[32:35], s64 offen offset:{o+1280} sc1", "s_mov_b64 exec, -1"]
        vq.extend([("t", t)]*3)
        return r
    def wait_tile(t):
        last = max(i for i, x in enumerate(vq) if x == ("t", t))
        return f"s_waitcnt vmcnt({len(vq)-1-last})"
    a(f"""
s_cmp_lg_u32 s27, 4
s_cbranch_scc1 P2_BQ
s_lshl_b32 s64, s49, {5+FSH}
s_add_u32 s64, s64, {WS_F1:#x}
v_and_b32 v4, 31, v2
v_lshlrev_b32 v4, {FSH}, v4
s_mov_b32 s65, {POLL_MAX}
P2_POLL:
buffer_load_dword v5, v4, s[32:35], s64 offen sc1
s_sub_u32 s65, s65, 1
s_cbranch_scc1 P2_BQ
s_waitcnt vmcnt(0)
v_cmp_ne_u32 vcc, s26, v5
s_cbranch_vccz P2_BQ
s_sleep {SL1}
s_branch P2_POLL
P2_BQ:
s_waitcnt lgkmcnt(0)
s_barrier
""")
    stamp(a, 4)
    for t in range(NS-1):
        for x in ld(t): a(x)
    a(f"""
ds_read_b128 {vr(Q0,4)}, v13
ds_read_b128 {vr(Q1,4)}, v13 offset:1024
""")
    a(f"""
s_min_u32 s60, s29, 27
s_mul_i32 s61, s28, 28
s_add_u32 s60, s60, s61
s_lshl_b32 s63, s27, 10
v_lshrrev_b32 v{T+1}, 3, v2
v_and_b32 v{T+2}, 7, v2
v_lshlrev_b32 v{T+3}, 1, v{T+1}
v_and_b32 v{T+3}, 4, v{T+3}
v_xor_b32 v{T+2}, v{T+2}, v{T+3}
v_lshlrev_b32 v{T+2}, 4, v{T+2}
v_mul_u32_u24 v{T}, 3584, v{T+1}
v_add_u32 v{T}, v{T}, v{T+2}
v_lshl_add_u32 v{T+1}, v{T+1}, 10, v{T+2}
s_lshl_b32 s70, s49, 7
s_lshl_b32 s71, s27, 13
s_add_u32 s70, s70, s71
s_lshr_b32 s77, s27, 1
s_cmp_gt_u32 s29, 27
s_cselect_b32 s76, 0, s27
s_cselect_b32 s77, 0, s77
s_cselect_b32 s78, 0, 1
s_cmp_gt_u32 s27, 3
s_cselect_b32 s78, 0, s78
s_lshl_b32 s61, s28, 3
s_add_u32 s61, s61, s27
s_mul_i32 s61, s61, {8*3584}
s_lshl_b32 s62, s29, 7
s_add_u32 s61, s61, s62
s_and_b32 s67, s27, 1
s_lshl_b32 s68, s67, 9
s_lshl_b32 s62, s60, 13
s_add_u32 s62, s62, s68
s_lshl_b32 s68, s67, 12
s_add_u32 s68, s68, {L_FD:#x}
v_lshrrev_b32 v{T+6}, 5, v2
v_lshl_add_u32 v{T+6}, v{T+6}, 9, v3
""")
    for i in range(16): a(f"v_mov_b64 {vr(O0+2*i,2)}, 0")
    srd(a, 36, 14, 512*3584); srd(a, 40, 16, 512*3584); srd(a, 44, 18, 512*3584); srd(a, 72, 8, 0x80000)
    a(f"""
{wait_tile(0)} lgkmcnt(0)
v_mfma_f32_32x32x16_bf16 {vr(S0,16)}, {vr(FS[0],4)}, {vr(Q0,4)}, 0
v_mfma_f32_32x32x16_bf16 {vr(S1,16)}, {vr(FS[0],4)}, {vr(Q1,4)}, 0
s_nop 10
""")
    if not E("PST", 0): stamp(a, 5)
    for S, M, t in ((S0, M0, T+2), (S1, M1, T+4)):
        a(f"v_max3_f32 v{t}, v{S}, v{S+1}, v{S+2}")
        for i in range(6): a(f"v_max3_f32 v{t}, v{t}, v{S+3+2*i}, v{S+4+2*i}")
        a(f"v_max_f32 v{t}, v{t}, v{S+15}\nv_mov_b32 v{t+1}, v{t}\ns_nop 1\nv_permlane32_swap_b32 v{t+1}, v{t}\ns_nop 1")
        a(f"v_max_f32 v{t}, v{t}, v{t+1}\nv_mul_f32 v{M}, -1.0, v{t}\nv_mul_f32 v{M+1}, -1.0, v{t}")
        for i in range(1, 8): a(f"v_mov_b64 {vr(M+2*i,2)}, {vr(M,2)}")
        if S == S0:
            a(f"s_nop 1\nv_mfma_f32_32x32x16_bf16 {vr(S0,16)}, {vr(FS[0],4)}, {vr(Q0,4)}, {vr(M0,16)}")
    def smf(o, v, p): return f"v_smfmac_f32_32x32x32_bf16 {vr(o,16)}, {vr(v,4)}, {vr(p,8)}, v12"
    def qk(d, k, q, mn): return f"v_mfma_f32_32x32x16_bf16 {vr(d,16)}, {vr(k,4)}, {vr(q,4)}, {vr(mn,16)}"
    if not E("PST", 0): stamp(a, 6)
    stampc(a, 7)
    prio_at = {0: 3, E("P2", 36): 2, E("P1", 56): 1, E("P0", 62): 0}
    KG = T+8
    extras = {}
    def addx(u, lines, nv=0): extras.setdefault(u, []).append((lines, nv))
    def hook(u, reg, val, lab): addx(u, [f"s_cmp_eq_u32 {reg}, {val}", f"s_cbranch_scc1 {lab}", f"{lab}_RET:"])
    U1 = E("U1", 1); SP = E("SP", 3); UK = U1 + 10; UC = U1 + 3*SP + 2*NS; US1 = E("US1", 23); US2 = E("US2", 24)
    assert UC < US1 and UK + 10 <= US1
    hook(U1, "s27", 1, "FW_LD")
    hook(UK, "s27", 1, "FW_KEYS")
    hook(US1, "s76", 1, "FW_S1")
    hook(US2, "s77", 3, "FW_S2A")
    hook(US2+8, "s77", 3, "FW_S2")
    hook(US2+20, "s77", 3, "FW_F3")
    for k in range(4):
        srdn, ldsb = [(36, L_FG), (40, L_FG+0x2000)][k & 1]
        half = k >> 1
        addx(U1 + SP*k, ["s_cmp_eq_u32 s78, 0", f"s_cbranch_scc1 FWS{k}", f"s_add_u32 m0, s63, {ldsb + half*0x1000:#x}", f"s_add_u32 s65, s61, {half*32*3584}",
                         f"buffer_load_dwordx4 v{T}, s[{srdn}:{srdn+3}], s65 offen lds", f"FWS{k}:"])
        addx(2 + 2*k, ["s_cmp_lg_u32 s77, 3", f"s_cbranch_scc1 FWD{k}", f"s_add_u32 m0, s68, {k*0x400:#x}", f"s_add_u32 s65, s62, {k*2048}",
                         f"buffer_load_dwordx4 v{T+6}, s[44:47], s65 offen lds", f"FWD{k}:"])
    addx(UC, ["s_cmp_eq_u32 s78, 0", "s_cbranch_scc1 FWSC", f"v_mov_b32 v{T+2}, {L_MISC+4:#x}", f"v_mov_b32 v{T+3}, 1", "s_mov_b64 exec, 1", f"ds_add_u32 v{T+2}, v{T+3}", "s_mov_b64 exec, -1", "FWSC:"])
    for g in range(8):
        addx(E('UWO', 27) + 4*g, [f"s_add_u32 m0, s63, {L_WO + g*0x2000:#x}", f"s_add_u32 s65, s70, {g*0x10000:#x}", f"buffer_load_dwordx4 v{T+1}, s[72:75], s65 offen lds"], 1)
    for kt in range(32):
        F = FS[kt % NS]; Fp = FS[(kt-1) % NS]; Fn = FS[(kt+1) % NS]
        for q in range(2):
            u = 2*kt+q
            cur, nxt = (S0, S1) if q == 0 else (S1, S0)
            Oc, On = (O0, O1) if q == 0 else (O1, O0)
            if u in prio_at: a(f"s_setprio {prio_at[u]}")
            if E("QST", 0) and u in (8, 16, 24, 32): stamp(a, {8: 0, 16: 1, 24: 2, 32: 3}[u])
            for i in range(16):
                if i == 2:
                    if u: a(smf(On, (Fp if q == 0 else F) + 8, nxt + 8))
                    if q == 0 and kt + NS - 1 < 32:
                        for x in ld(kt + NS - 1): a(x)
                if i == PQ and u != 63:
                    if q == 1:
                        a(wait_tile(kt+1))
                    a(qk(nxt, F if q == 0 else Fn, Q1 if q == 0 else Q0, M1 if q == 0 else M0))
                if i == 8 and u in extras:
                    for lines, nv in extras[u]:
                        for x in lines: a(x)
                        vq.extend([("x", u)]*nv)
                if i == PS: a(smf(Oc, F + 4, cur))
                a(f"v_exp_f32 v{cur+i}, v{cur+i}")
    FL = FS[31 % NS]; FA = FS[0]
    a(f"s_nop 1\n{smf(O1, FL+8, S1+8)}")
    stampc(a, 7)
    if not E("PST", 0): stamp(a, 8)
    a(f"""
s_lshl_b32 s64, s27, 11
s_xor_b32 s65, s64, 0x2000
v_add_u32 v14, s64, v3
v_add_u32 v15, s65, v3
s_lshr_b32 s64, s64, 2
s_lshr_b32 s65, s65, 2
v_lshlrev_b32 v{T+2}, 3, v2
v_add_u32 v{T+3}, s65, v{T+2}
v_add_u32 v{T+2}, s64, v{T+2}
v_add_u32 v14, {L_OX:#x}, v14
v_add_u32 v15, {L_OX:#x}, v15
v_add_u32 v{T+2}, {L_LS:#x}, v{T+2}
v_add_u32 v{T+3}, {L_LS:#x}, v{T+3}
v_mov_b32 v{O0+9}, v{M0}
v_mov_b32 v{O1+9}, v{M1}
s_cmp_eq_u32 s52, 0
s_cbranch_scc1 P2_X0
ds_write_b128 v14, {vr(O0,4)}
ds_write_b128 v14, {vr(O0+4,4)} offset:1024
ds_write_b64 v{T+2}, {vr(O0+8,2)}
""")
    for i in range(5): a(f"v_mov_b64 {vr(O0+2*i,2)}, {vr(O1+2*i,2)}")
    for i in range(2): a(f"v_mov_b64 {vr(Q0+2*i,2)}, {vr(Q1+2*i,2)}")
    a(f"""
s_branch P2_X1
P2_X0:
ds_write_b128 v14, {vr(O1,4)}
ds_write_b128 v14, {vr(O1+4,4)} offset:1024
ds_write_b64 v{T+2}, {vr(O1+8,2)}
P2_X1:
s_lshl_b32 s55, s48, 1
s_add_u32 s55, s55, s52
s_lshl_b32 s55, s55, 5
s_add_u32 s55, s55, s53
s_lshl_b32 s56, s55, 10
s_add_u32 s56, s56, {WS_OF:#x}
s_lshl_b32 s66, s48, {3+FSH}
s_add_u32 s66, s66, {WS_F2:#x}
s_lshl_b32 s55, s49, {FSH}
s_add_u32 s55, s55, s66
s_waitcnt lgkmcnt(0)
s_barrier
ds_read_b64 {vr(S0+8,2)}, v{T+3}
ds_read_b128 {vr(S0,4)}, v15
ds_read_b128 {vr(S0+4,4)}, v15 offset:1024
s_mov_b32 s68, 0
s_waitcnt lgkmcnt(2)
v_min_f32 v{T+4}, v{O0+9}, v{S0+9}
v_sub_f32 v{T+5}, v{T+4}, v{O0+9}
v_sub_f32 v{T+6}, v{T+4}, v{S0+9}
v_exp_f32 v{T+5}, v{T+5}
v_exp_f32 v{T+6}, v{T+6}
v_add_f32 v{T+7}, v{O0+8}, v{S0+8}
v_mul_f32 v{O0+8}, v{O0+8}, v{T+5}
v_cmp_ngt_f32 vcc, {f32bits(2.0**40):#x}, v{T+7}
v_fmac_f32 v{O0+8}, v{S0+8}, v{T+6}
v_rcp_f32 v{T+2}, v{O0+8}
s_mov_b64 s[64:65], vcc
v_mul_f32 v{T+5}, v{T+5}, v{T+2}
v_mul_f32 v{T+6}, v{T+6}, v{T+2}
s_waitcnt lgkmcnt(0)
""")
    for i in range(8): a(f"v_mul_f32 v{O0+i}, v{O0+i}, v{T+5}")
    for i in range(8): a(f"v_fmac_f32 v{O0+i}, v{S0+i}, v{T+6}")
    a(f"""
v_add_f32 v{T+3}, |v{O0}|, |v{O0+1}|
v_add_f32 v{T+4}, |v{O0+2}|, |v{O0+3}|
v_add_f32 v{T+5}, |v{O0+4}|, |v{O0+5}|
v_add_f32 v{T+6}, |v{O0+6}|, |v{O0+7}|
v_add_f32 v{T+3}, v{T+3}, v{T+4}
v_add_f32 v{T+5}, v{T+5}, v{T+6}
v_add_f32 v{T+3}, v{T+3}, v{T+5}
v_cmp_ngt_f32 vcc, 0x7f800000, v{T+3}
s_or_b64 vcc, vcc, s[64:65]
s_cbranch_vccnz P2_FALLBACK
P2_STORE:
""")
    for i in range(4): a(f"v_cvt_pk_bf16_f32 v{S0+i}, v{O0+2*i}, v{O0+2*i+1}")
    a(f"""
buffer_store_dwordx4 {vr(S0,4)}, v3, s[32:35], s56 offen sc1
v_mov_b32 v{T+2}, s26
v_mov_b32 v{T+3}, 0
s_add_u32 s69, s30, s31
s_and_b32 s69, s69, 3
s_cmp_lt_u32 s27, 4
s_cbranch_scc1 P3_COMPUTE
s_and_b32 s70, s51, 1
s_lshl_b32 s71, s48, 1
s_add_u32 s71, s71, s70
v_and_b32 v4, 7, v2
v_lshlrev_b32 v4, {FSH}, v4
s_mov_b32 s68, {POLL_MAX}
s_lshl_b32 s71, s71, 15
s_lshr_b32 s67, s51, 1
s_lshl_b32 s67, s67, 12
s_add_u32 s71, s71, s67
s_add_u32 s71, s71, {WS_OF:#x}
s_lshl_b32 s70, s70, 13
s_add_u32 s70, s70, s67
s_waitcnt vmcnt(0)
s_barrier
""")
    stamp(a, 9)
    a(f"""
P3_POLL:
s_sleep {SL2}
buffer_load_dword v5, v4, s[32:35], s66 offen sc1
s_sub_u32 s68, s68, 1
s_cbranch_scc1 P3_POLLED
s_waitcnt vmcnt(0)
v_cmp_ne_u32 vcc, s26, v5
s_cbranch_vccnz P3_POLL
P3_POLLED:
""")
    stamp(a, 10)
    for n in range(4):
        a(f"""s_add_u32 s64, s69, {n}
s_and_b32 s64, s64, 3
s_lshl_b32 s65, s64, 14
s_add_u32 s65, s65, s70
s_add_u32 m0, s65, {L_OF:#x}
s_lshl_b32 s64, s64, 13
s_add_u32 s64, s64, s71""")
        for i in range(4): a(f"buffer_load_dwordx4 v3, s[32:35], s64 offen offset:{i*1024} sc1 lds")
    for n in range(4): a(f"s_waitcnt vmcnt({12-4*n})\ns_barrier")
    endpgm(a)
    ACC3 = 64; X = 80; Y = 88; FR = 16; T3 = 104; B = 48
    a(f"""
P3_COMPUTE:
s_and_b32 s70, s27, 1
s_lshr_b32 s71, s27, 1
v_lshrrev_b32 v4, 5, v2
v_and_b32 v5, 31, v2
s_lshl_b32 s66, s48, 6
s_lshl_b32 s67, s70, 5
s_add_u32 s66, s66, s67
v_add_u32 v12, s66, v5
s_lshl_b32 s67, s49, 6
s_lshl_b32 s60, s71, 5
s_add_u32 s67, s67, s60
v_lshl_add_u32 v13, v4, 4, s67
v_lshlrev_b32 v14, 10, v12
v_lshl_add_u32 v14, v13, 1, v14
v_lshlrev_b32 v15, 2, v12
v_lshlrev_b32 v13, 2, v13
v_mov_b32 v6, {L_MISC:#x}
ds_read_b32 v{T3}, v6
""")
    srd(a, 40, 4, 0x200000)
    srd(a, 44, 22, 0x200000)
    a(f"""
s_mov_b32 s60, {WS_G:#x}
s_waitcnt vmcnt(0)
s_barrier
s_cmp_lg_u32 s27, 0
s_cbranch_scc1 P3_NOF2
s_mov_b64 exec, 1
buffer_store_dword v{T+2}, v{T+3}, s[32:35], s55 offen sc1
s_mov_b64 exec, -1
P3_NOF2:
""")
    stamp(a, 9)
    a(f"""
buffer_load_dword v{T3+1}, v15, s[32:35], s60 offen sc1
buffer_load_dwordx4 {vr(X,4)}, v14, s[40:43], 0 offen
buffer_load_dwordx4 {vr(X+4,4)}, v14, s[40:43], 0 offen offset:16
s_lshl_b32 s66, s70, 13
s_add_u32 s66, s66, {L_OF:#x}
v_add_u32 v10, s66, v3
v_bfe_u32 v6, v2, 2, 2
v_lshl_add_u32 v7, v4, 2, v6
v_lshlrev_b32 v7, 7, v7
v_lshrrev_b32 v6, 1, v6
v_xor_b32 v6, s71, v6
v_lshl_add_u32 v7, v6, 6, v7
v_and_b32 v6, 1, v2
v_lshl_add_u32 v7, v6, 5, v7
v_bfe_u32 v6, v2, 4, 1
v_lshl_add_u32 v7, v6, 4, v7
v_bfe_u32 v6, v2, 1, 1
v_lshl_add_u32 v11, v6, 3, v7
""")
    for i in range(8): a(f"v_mov_b64 {vr(ACC3+2*i,2)}, 0")
    a(f"""
s_waitcnt lgkmcnt(0)
v_and_b32 v{T3+2}, 0x7ff, v{T3}
v_sub_u32 v{T3+2}, 0x7ff, v{T3+2}
v_cmp_eq_u32 s[76:77], v{T3+2}, v12
v_and_b32 v{T3}, 0xffff0000, v{T3}
v_ashrrev_i32 v{T3+3}, 31, v{T3}
v_not_b32 v{T3+3}, v{T3+3}
v_or_b32 v{T3+3}, 0x80000000, v{T3+3}
v_xor_b32 v{T3}, v{T3}, v{T3+3}
v_and_b32 v{T3}, 0xffff0000, v{T3}
v_mul_f32 v{T3}, {f32bits(-LOG2E):#x}, v{T3}
v_exp_f32 v{T3}, v{T3}
s_waitcnt vmcnt(0)
v_sub_f32 v{T3+4}, 1.0, v{T3+1}
v_add_f32 v{T3}, 1.0, v{T3}
v_rcp_f32 v{T3}, v{T3}
""")
    for i in range(8):
        a(f"v_lshlrev_b32 v{B+2*i}, 16, v{X+i}\nv_and_b32 v{B+2*i+1}, 0xffff0000, v{X+i}")
    a(f"""
s_cmp_eq_u64 s[76:77], 0
s_cbranch_scc1 P3_NOSEL
s_mov_b32 s60, {WS_F3:#x}
s_mov_b32 s68, {POLL_MAX}
v_mul_u32_u24 v6, 12, v2
P3_POLL3:
buffer_load_dwordx4 {vr(Y,4)}, v3, s[32:35], s60 offen sc1
buffer_load_dwordx3 {vr(Y+4,3)}, v6, s[32:35], s60 offen offset:1024 sc1
s_sub_u32 s68, s68, 1
s_cbranch_scc1 P3_POLLED3
s_waitcnt vmcnt(0)
v_cmp_ne_u32 vcc, s26, v{Y}
""")
    for i in range(1, 7): a(f"v_cmp_ne_u32 s[64:65], s26, v{Y+i}\ns_or_b64 vcc, vcc, s[64:65]")
    a(f"""
s_cbranch_vccnz P3_POLL3
P3_POLLED3:
s_mov_b32 s60, {WS_Y:#x}
v_lshl_add_u32 v6, v5, 11, v13
""")
    for i in range(4): a(f"buffer_load_dwordx4 {vr(Y+4*i,4)}, v6, s[32:35], s60 offen offset:{16*i} sc1")
    a("s_waitcnt vmcnt(0)")
    for pat in ("row_ror:8", "row_ror:4", "row_ror:2", "row_ror:1"):
        for i in range(16): a(f"v_add_f32_dpp v{Y+i}, v{Y+i}, v{Y+i} {pat} row_mask:0xf bank_mask:0xf")
    for i in range(16): a(f"v_mov_b32 v{FR+i}, v{Y+i}")
    for i in range(16): a(f"v_permlane16_swap_b32 v{FR+i}, v{Y+i}")
    for i in range(16): a(f"v_add_f32 v{Y+i}, v{Y+i}, v{FR+i}")
    a("s_mov_b64 exec, s[76:77]")
    for i in range(16): a(f"v_fmac_f32 v{B+i}, v{Y+i}, v{T3}")
    a("s_mov_b64 exec, -1\nP3_NOSEL:")
    for i in range(16): a(f"v_mul_f32 v{B+i}, v{B+i}, v{T3+4}")
    a(f"""
s_add_u32 s66, s69, 4
P3_LOOP:
s_and_b32 s60, s69, 3
s_lshl_b32 s60, s60, 14
v_add_u32 v8, s60, v10
v_add_u32 v9, s60, v11
s_add_u32 s69, s69, 1
s_barrier
""")
    def reads3(hh):
        b = FR + 8*(hh % 4)
        a(f"ds_read_b128 {vr(b,4)}, v8 offset:{hh*1024}")
        a(f"ds_read_b64_tr_b16 {vr(b+4,2)}, v9 offset:{hh*2048}")
        a(f"ds_read_b64_tr_b16 {vr(b+6,2)}, v9 offset:{hh*2048+1024}")
    for hh in range(4): reads3(hh)
    for hh in range(8):
        b = FR + 8*(hh % 4)
        a(f"s_waitcnt lgkmcnt({3*min(3, 7-hh)})")
        a(f"v_mfma_f32_32x32x16_bf16 {vr(ACC3,16)}, {vr(b+4,4)}, {vr(b,4)}, {vr(ACC3,16)}")
        if hh + 4 < 8: reads3(hh+4)
    a(f"""
s_cmp_lg_u32 s69, s66
s_cbranch_scc1 P3_LOOP
s_nop 10
""")
    stamp(a, 10)
    for i in range(16): a(f"v_fmac_f32 v{B+i}, v{ACC3+i}, v{T3+1}")
    for i in range(8): a(f"v_cvt_pk_bf16_f32 v{X+i}, v{B+2*i}, v{B+2*i+1}")
    a(f"""
buffer_store_dwordx4 {vr(X,4)}, v14, s[44:47], 0 offen
buffer_store_dwordx4 {vr(X+4,4)}, v14, s[44:47], 0 offen offset:16
s_or_b32 s64, s2, s27
s_cbranch_scc1 L_END
s_mov_b32 s64, {WS_E:#x}
s_mov_b64 exec, 1
buffer_store_dword v{T+2}, v{T+3}, s[32:35], s64 offen sc1
L_END:
""")
    endpgm(a)
    a("L_EXIT:\ns_endpgm")
    A = T+4; R = T+8; H = T+44
    assert T+76 <= FS[0]
    def flagstore(ret, addr_lines):
        a(f"{addr_lines}\nv_mov_b32 v{T+2}, s26\nv_mov_b32 v{T+3}, 0\ns_waitcnt vmcnt(12)\ns_mov_b64 exec, 1")
        a(f"buffer_store_dword v{T+2}, v{T+3}, s[32:35], s65 offen sc1\ns_mov_b64 exec, -1\ns_branch {ret}")
    def cntwait(lab):
        a(f"""v_mov_b32 v{A}, {L_MISC+4:#x}
s_mov_b32 s79, {POLL_MAX}
{lab}:
ds_read_b32 v{A+1}, v{A}
s_sub_u32 s79, s79, 1
s_cbranch_scc1 {lab}OK
s_waitcnt lgkmcnt(0)
v_cmp_ne_u32 vcc, 4, v{A+1}
s_cbranch_vccz {lab}OK
s_sleep 2
s_branch {lab}
{lab}OK:""")
    a(f"""
FW_LD:
s_mov_b32 s79, {POLL_MAX}
s_mov_b32 s65, {WS_KG:#x}
buffer_load_dwordx4 {vr(KG,4)}, v3, s[32:35], s65 offen sc1
buffer_load_dwordx4 {vr(KG+4,4)}, v3, s[32:35], s65 offen offset:1024 sc1
s_branch FW_LD_RET
FW_KEYRE:
s_mov_b32 s65, {WS_KG:#x}
buffer_load_dwordx4 {vr(KG,4)}, v3, s[32:35], s65 offen sc1
buffer_load_dwordx4 {vr(KG+4,4)}, v3, s[32:35], s65 offen offset:1024 sc1
s_waitcnt vmcnt(0)
FW_KEYS:
s_waitcnt vmcnt(12)
v_cmp_ne_u32 vcc, s26, v{KG+1}
v_cmp_ne_u32 s[66:67], s26, v{KG+3}
s_or_b64 vcc, vcc, s[66:67]
v_cmp_ne_u32 s[66:67], s26, v{KG+5}
s_or_b64 vcc, vcc, s[66:67]
v_cmp_ne_u32 s[66:67], s26, v{KG+7}
s_or_b64 vcc, vcc, s[66:67]
s_sub_u32 s79, s79, 1
s_cbranch_scc1 FW_KEYOK
s_cbranch_vccnz FW_KEYRE
FW_KEYOK:
v_max3_u32 v{KG}, v{KG}, v{KG+2}, v{KG+4}
v_max_u32 v{KG}, v{KG}, v{KG+6}
""")
    umax_reduce64(a, KG, KG+1)
    srd(a, XS_SRD, 4, 0x200000)
    XF = T+68
    a(f"""
v_readfirstlane_b32 s65, v{KG}
v_mov_b32 v{KG+1}, {L_MISC:#x}
ds_write_b32 v{KG+1}, v{KG}
v_lshrrev_b32 v{A}, 4, v2
v_lshlrev_b32 v{A}, 4, v{A}
s_and_b32 s65, s65, 0x7ff
s_sub_u32 s65, 0x7ff, s65
s_lshl_b32 s65, s65, 10
s_lshl_b32 s66, s28, 7
s_add_u32 s65, s65, s66
buffer_load_dwordx4 {vr(XF,4)}, v{A}, s[{XS_SRD}:{XS_SRD+3}], s65 offen
buffer_load_dwordx4 {vr(XF+4,4)}, v{A}, s[{XS_SRD}:{XS_SRD+3}], s65 offen offset:64
s_branch FW_KEYS_RET
FW_S1:
""")
    cntwait("FW_C1")
    a(f"""
v_lshrrev_b32 v{A}, 4, v2
v_bfe_u32 v{A+1}, v2, 2, 2
v_lshl_add_u32 v{A}, v{A}, 3, v{A+1}
v_lshlrev_b32 v{A}, 7, v{A}
v_and_b32 v{A+2}, 3, v2
v_lshl_add_u32 v{A}, v{A+2}, 3, v{A}
v_lshrrev_b32 v{A+1}, 1, v{A+1}
v_lshl_add_u32 v{A}, v{A+1}, 6, v{A}
v_add_u32 v{A}, {L_FG:#x}, v{A}
v_xor_b32 v{A+1}, 64, v{A}
s_waitcnt vmcnt(12)
""")
    AC = T+36
    for m in range(2):
        for ks in range(2):
            for q in range(4):
                ad = A + (q >> 1)
                for jj in range(2):
                    a(f"ds_read_b64_tr_b16 {vr(R+4*q+2*jj,2)}, v{ad} offset:{m*0x2000 + ks*4096 + jj*512 + (q&1)*32}")
            for q in range(4):
                acc = vr(AC + 4*(m*4+q), 4)
                a(f"s_waitcnt lgkmcnt({6-2*q})")
                a(f"v_mfma_f32_16x16x32_bf16 {acc}, {vr(XF+4*ks,4)}, {vr(R+4*q,4)}, {acc if ks else 0}")
    a(f"""
v_lshlrev_b32 v{A}, 7, v2
s_lshl_b32 s65, s29, 13
s_lshl_b32 s66, s28, 4
s_add_u32 s65, s65, s66
s_add_u32 s65, s65, {WS_PRE:#x}
s_nop 3
v_mov_b32 v{AC+1}, v{AC+16}
v_mov_b32 v{AC+2}, s26
""")
    for lo, hi, q in ((0xffff0000, 0, 1), (0, 0xffff, 2), (0, 0xffff0000, 3)):
        a(f"s_mov_b32 exec_lo, {lo:#x}\ns_mov_b32 exec_hi, {hi:#x}\nv_mov_b32 v{AC}, v{AC+4*q}\nv_mov_b32 v{AC+1}, v{AC+16+4*q}")
    G = T+40
    HT = L_XS
    a(f"""
s_mov_b64 exec, -1
buffer_store_dwordx4 {vr(AC,4)}, v{A}, s[32:35], s65 offen sc1
s_branch FW_S1_RET
FW_S2A:
s_mov_b32 s79, {POLL_MAX}
s_lshl_b32 s65, s60, 10
s_add_u32 s65, s65, {WS_PRE:#x}
buffer_load_dwordx4 {vr(G,4)}, v3, s[32:35], s65 offen sc1
s_lshl_b32 s66, s27, 8
s_add_u32 s66, s66, {HT - 6*256:#x}
v_lshl_add_u32 v{A}, v2, 2, s66
v_mov_b32 v{A+1}, 0
ds_write_b32 v{A}, v{A+1}
s_branch FW_S2A_RET
FW_S2RE:
s_sleep 8
s_lshl_b32 s65, s60, 10
s_add_u32 s65, s65, {WS_PRE:#x}
buffer_load_dwordx4 {vr(G,4)}, v3, s[32:35], s65 offen sc1
s_waitcnt vmcnt(0)
FW_S2:
s_waitcnt vmcnt(12)
v_cmp_ne_u32 vcc, s26, v{G+2}
s_sub_u32 s79, s79, 1
s_cbranch_scc1 FW_S2OK
s_cbranch_vccnz FW_S2RE
FW_S2OK:
v_bfe_u32 v{A+2}, v2, 2, 3
v_lshlrev_b32 v{A+2}, 9, v{A+2}
v_and_b32 v{A+3}, 3, v2
v_lshl_add_u32 v{A+2}, v{A+3}, 3, v{A+2}
v_add_u32 v{A+2}, s68, v{A+2}
""")
    WF = R; YA = T+56
    pats = ("quad_perm:[1,0,3,2]", "quad_perm:[2,3,0,1]", "row_half_mirror")
    for k, pat in enumerate(pats):
        for i in range(2): a(f"v_add_f32_dpp v{G+i}, v{G+i}, v{G+i} {pat} row_mask:0xf bank_mask:0xf")
        for q in range(4*k, 4*k+4): a(f"ds_read_b64_tr_b16 {vr(WF+2*q,2)}, v{A+2} offset:{q*32}")
    a(f"""
v_mul_f32 v{G+2}, {f32bits(-LOG2E):#x}, v{G}
v_exp_f32 v{G+2}, v{G+2}
v_mul_f32 v{G}, v{G}, v{G+1}
s_lshl_b32 s66, s27, 8
s_add_u32 s66, s66, {HT - 6*256 + 96:#x}
v_add_f32 v{G+2}, 1.0, v{G+2}
v_rcp_f32 v{G+2}, v{G+2}
v_lshrrev_b32 v{A}, 3, v2
v_lshl_add_u32 v{A}, v{A}, 1, s66
v_mul_f32 v{G}, v{G}, v{G+2}
v_cvt_pk_bf16_f32 v{G}, v{G}, v{G}
ds_write_b16 v{A}, v{G}
v_lshrrev_b32 v{A}, 4, v2
v_lshl_add_u32 v{A}, v{A}, 3, s66
v_bfe_u32 v{A+1}, v2, 2, 2
v_lshlrev_b32 v{A+1}, 5, v{A+1}
v_sub_u32 v{A}, v{A}, v{A+1}
s_waitcnt lgkmcnt(4)
""")
    for q in range(12, 16): a(f"ds_read_b64_tr_b16 {vr(WF+2*q,2)}, v{A+2} offset:{q*32}")
    for j in range(4): a(f"ds_read_b64 {vr(H+2*j,2)}, v{A} offset:{j*32}")
    a(f"""
v_lshlrev_b32 v{A+1}, 2, v2
s_and_b32 s65, s60, 31
s_lshl_b32 s65, s65, 11
s_and_b32 s66, s27, 1
s_lshl_b32 s66, s66, 10
s_add_u32 s65, s65, s66
s_add_u32 s65, s65, {WS_Y:#x}
s_waitcnt lgkmcnt(0)""")
    for j in range(4):
        for Qn in range(4):
            acc = vr(YA + 4*Qn, 4)
            a(f"v_mfma_f32_16x16x16_bf16 {acc}, {vr(H+2*j,2)}, {vr(WF+2*(Qn*4+j),2)}, {acc if j else 0}")
    a("s_nop 7")
    for Qn in range(4):
        a(f"buffer_atomic_add_f32 v{YA+4*Qn}, v{A+1}, s[32:35], s65 offen offset:{Qn*256}")
    a("s_branch FW_S2_RET\nFW_F3:")
    flagstore("FW_F3_RET", f"s_lshl_b32 s65, s60, 1\ns_and_b32 s66, s27, 1\ns_add_u32 s65, s65, s66\ns_lshl_b32 s65, s65, 2\ns_add_u32 s65, s65, {WS_F3:#x}")
    a(f"""
P2_FALLBACK:
s_mov_b32 s64, s54
s_add_u32 s65, s54, 0x20000
v_mov_b32 v{T+2}, 0xff800000
FB_MAX:
buffer_load_dwordx4 {vr(FA,4)}, v3, s[32:35], s64 offen sc1
s_add_u32 s64, s64, 2048
s_waitcnt vmcnt(0)
v_mfma_f32_32x32x16_bf16 {vr(S0,16)}, {vr(FA,4)}, {vr(Q0,4)}, 0
s_nop 15
""")
    for i in range(8): a(f"v_max3_f32 v{T+2}, v{T+2}, v{S0+2*i}, v{S0+2*i+1}")
    a(f"""
s_cmp_lt_u32 s64, s65
s_cbranch_scc1 FB_MAX
v_mov_b32 v{T+3}, v{T+2}
s_nop 1
v_permlane32_swap_b32 v{T+3}, v{T+2}
s_nop 1
v_max_f32 v{T+2}, v{T+2}, v{T+3}
""")
    for i in range(16): a(f"v_mul_f32 v{M0+i}, -1.0, v{T+2}")
    for i in range(8): a(f"v_mov_b64 {vr(O0+2*i,2)}, 0")
    a(f"""
s_mov_b32 s64, s54
FB_ACC:
buffer_load_dwordx4 {vr(FA,4)}, v3, s[32:35], s64 offen sc1
s_mov_b64 exec, s[58:59]
buffer_load_dwordx4 {vr(FA+4,4)}, v3, s[32:35], s64 offen offset:1024 sc1
buffer_load_dwordx4 {vr(FA+8,4)}, v3, s[32:35], s64 offen offset:1280 sc1
s_mov_b64 exec, -1
s_add_u32 s64, s64, 2048
s_waitcnt vmcnt(0)
{qk(S0, FA, Q0, M0)}
s_nop 15
""")
    for i in range(16): a(f"v_exp_f32 v{S0+i}, v{S0+i}")
    a(f"""
s_nop 1
{smf(O0, FA+4, S0)}
{smf(O0, FA+8, S0+8)}
s_cmp_lt_u32 s64, s65
s_cbranch_scc1 FB_ACC
s_nop 15
v_rcp_f32 v{T+2}, v{O0+8}
s_nop 0
""")
    for i in range(8): a(f"v_mul_f32 v{O0+i}, v{O0+i}, v{T+2}")
    a("s_branch P2_STORE\nL_CODE_END:")
    return name

def main():
    body = Asm()
    name = gen(body)
    vg, sg = (256, 100)
    txt = body.text()
    txt = txt.replace("    s_mov_b32 s54, 1\n    s_waitcnt lgkmcnt(0)\n    s_cselect_b32 s36", "    s_mov_b32 s54, 1\n    s_cmp_lt_u32 s51, 2\n    s_waitcnt lgkmcnt(0)\n    s_cselect_b32 s36")
    out = f"""; generated by gen/gen4.py (own generator script)
; @launch grid=(256,1,1) block=(512,1,1) lds={LDS_BYTES}
.amdgcn_target "amdgcn-amd-amdhsa--gfx950"
.text
""" + txt + f""".section .rodata,"a"
.p2align 6
.amdhsa_kernel {name}
  .amdhsa_next_free_vgpr {vg}
  .amdhsa_next_free_sgpr {sg}
  .amdhsa_accum_offset {vg}
  .amdhsa_group_segment_fixed_size 0
  .amdhsa_kernarg_size 96
  .amdhsa_user_sgpr_count 2
  .amdhsa_user_sgpr_kernarg_segment_ptr 1
  .amdhsa_system_sgpr_workgroup_id_x 1
.end_amdhsa_kernel
"""
    if EXP & 1:
        i0 = out.index("P2_PRE:"); i1 = out.index("P2_X0:")
        out = out[:i0] + out[i0:i1].replace(" sc1", "") + out[i1:]
    if EXP & 2:
        out = "\n".join(("    buffer_load_dwordx4 v3, s[44:47], s62 offen lds" if ("s[36:39], s61 offen lds" in l or "s[40:43], s61 offen lds" in l) else l) for l in out.split("\n"))
    if EXP & 4:
        i0 = out.index("P2_BQ:"); i1 = out.index("P2_X0:")
        out = out[:i0] + "\n".join(l for l in out[i0:i1].split("\n") if "s_cbranch_scc1 FW_" not in l) + "\n" + out[i1:]
        out = out.replace("    s_cmp_eq_u64 s[76:77], 0\n    s_cbranch_scc1 P3_NOSEL", "    s_branch P3_NOSEL")
    path = sys.argv[1] if len(sys.argv) > 1 else f"cdna_kernels/{NAME}.s"
    open(path, "w").write(out)
main()
```

```python
import math, struct, sys, os

NAME = "gated_mix__mha_block__moe_arch_mod__prompt"
E = lambda k, d: int(os.environ.get(k, str(d)))
STAMP = bool(os.environ.get("STAMP"))
EXP = E("EXP", 0)

WS_KV = 0x200000
WS_OF = 0x600000
WS_G  = 0x800000
WS_Y  = 0x860000
WS_KG = 0x816000
WS_F3 = 0x815000
WS_E  = 0x818000
WS_F1 = 0x820000
WS_PRE = 0x880000
WS_F2 = 0x840000
FSH = E("FSH", 5)
WS_SIZE = 0x10000000
POLL_MAX = 1 << 18

L_WO = 0x00000; L_OF = 0x10000
L_FG = 0x10000; L_FD = 0x14000; L_XS = 0x16000
L_OX = 0x20000; L_LS = 0x24000; L_Q = 0x25000; L_MISC = 0x27000
LDS_BYTES = 0x28000

def f32bits(x): return struct.unpack("<I", struct.pack("<f", x))[0]
LOG2E = 1.4426950408889634
QSCALE = 0.25 * LOG2E

class Asm:
    def __init__(self): self.l = []
    def __call__(self, s):
        for line in s.strip("\n").split("\n"):
            line = line.strip()
            if not line: continue
            if line.endswith(":") : self.l.append(line)
            else: self.l.append("    " + line)
    def text(self): return "\n".join(self.l) + "\n"

def vr(a, n): return f"v[{a}:{a+n-1}]"
def srd(a, d, lo, nbytes):
    a(f"s_mov_b32 s{d}, s{lo}\ns_mov_b32 s{d+1}, s{lo+1}\ns_mov_b32 s{d+2}, {nbytes:#x}\ns_mov_b32 s{d+3}, 0x00020000")

NST = 10
LEAK = os.environ.get('LEAK', '').split(',') if os.environ.get('LEAK') else None
XS_SRD = 96
MAP = E("MAP", 0); ROT = E("ROT", 0)
ROTI = {0: "s_mov_b32 s55, 0", 1: "s_lshl_b32 s55, s31, 14", 2: "s_lshl_b32 s55, s48, 12", 3: "s_lshl_b32 s55, s31, 13"}[ROT]
SL1 = E("SL1", 4); SL2 = E("SL2", 4); PQ = E("PQ", 5); PS = E("PS", 11); NS = E("NS", 5); LA = E("LA", 4); FLAGAT = E("FLAGAT", 14)
def stamp(a, slot):
    if not STAMP: return
    a(f"s_memrealtime s[82:83]\ns_waitcnt lgkmcnt(0)\ns_mov_b32 s{86+slot if slot < 10 else 85}, s82")
def stampc(a, slot):
    if not STAMP: return
    a(f"s_memtime s[82:83]\ns_waitcnt lgkmcnt(0)\ns_sub_u32 s{86+slot}, s82, s{86+slot}")
def endpgm(a):
    if STAMP:
        a(f"""s_waitcnt vmcnt(0)
s_memrealtime s[82:83]
s_waitcnt lgkmcnt(0)
s_mov_b64 exec, 1
s_lshl_b32 s79, s2, 3
s_add_u32 s79, s79, s27
s_lshl_b32 s79, s79, 6
s_add_u32 s79, s79, 0x1000000
v_mov_b32 v249, s79
v_mov_b32 v232, s80
v_mov_b32 v233, s82""")
        for i in range(NST): a(f"v_mov_b32 v{234+i}, s{86+i}")
        a("v_mov_b32 v244, s85\nv_mov_b32 v245, 0\nv_mov_b32 v246, 0\nv_mov_b32 v247, 0")
        for i in range(4): a(f"global_store_dwordx4 v249, {vr(232+4*i,4)}, s[24:25] offset:{16*i}")
        if LEAK:
            lo, hi = LEAK
            reg = lambda k: {"start": "s80", "end": "s82", "10": "s85"}.get(k, f"s{86+int(k)}" if k.isdigit() else None)
            lab = f"L_LK{len(a.l)}"
            a(f"s_cmp_lg_u32 s2, 0\ns_cbranch_scc1 {lab}\ns_cmp_lg_u32 s27, 0\ns_cbranch_scc1 {lab}")
            a(f"s_sub_u32 s4, {reg(hi)}, {reg(lo)}\ns_lshl_b32 s4, s4, 2\n{lab}_w:\ns_memrealtime s[6:7]\ns_waitcnt lgkmcnt(0)\ns_sub_u32 s5, s6, s82\ns_cmp_lt_u32 s5, s4\ns_cbranch_scc1 {lab}_w\n{lab}:")
    a("s_endpgm")

def umax_reduce64(a, v, t):
    for pat in ("quad_perm:[1,0,3,2]", "quad_perm:[2,3,0,1]", "row_half_mirror", "row_mirror"):
        a(f"s_nop 1\nv_max_u32_dpp v{v}, v{v}, v{v} {pat} row_mask:0xf bank_mask:0xf")
    for sw in ("v_permlane16_swap_b32", "v_permlane32_swap_b32"):
        a(f"v_mov_b32 v{t}, v{v}\ns_nop 1\n{sw} v{t}, v{v}\ns_nop 1\nv_max_u32 v{v}, v{v}, v{t}")

GROUPS = {0: [0,1,3,5,7,9,11,13,14,15], 1: list(range(16)), 2: [0,1,2,3,5,7,9,11,13,15], 3: [0,1,3,5,7,11,13,15]}[E("GRP", 0)]
DIST = E("DIST", 6)
for _k, _g in enumerate(GROUPS[:-1]):
    _a = GROUPS[_k-1] + 1 if _k else 0
    assert min(15, GROUPS[_k+1] + LA - 1) - 8 <= _a - 2, (_g, LA)
assert GROUPS[0] + LA - 1 < 8
SEC_A, SEC_B, SEC_C = 1, 2, 0

def gen(a):
    name = NAME + "_kernel"
    a.l.append(f".globl {name}\n.p2align 8\n.type {name},@function\n{name}:")
    if STAMP:
        a("s_memrealtime s[80:81]")
        for i in range(NST): a(f"s_mov_b32 s{86+i}, 0")
    a("""
s_cmp_ge_u32 s2, 256
s_cbranch_scc1 L_EXIT
s_load_dwordx4 s[4:7], s[0:1], 0
s_load_dwordx2 s[24:25], s[0:1], 88
s_load_dwordx2 s[8:9], s[0:1], 16
s_load_dwordx8 s[12:19], s[0:1], 32
s_load_dwordx4 s[20:23], s[0:1], 64
v_lshrrev_b32 v1, 6, v0
v_and_b32 v2, 63, v0
s_and_b32 s28, s2, 7
v_readfirstlane_b32 s27, v1
s_lshr_b32 s29, s2, 3
s_lshr_b32 s48, s28, 1
s_lshl_b32 s48, s48, 3
s_lshr_b32 s31, s29, 2
s_add_u32 s48, s48, s31
s_and_b32 s30, s29, 3
s_and_b32 s49, s28, 1
s_lshl_b32 s49, s49, 2
s_add_u32 s49, s49, s30
s_lshl_b32 s50, s30, 1
s_add_u32 s50, s50, s31
s_and_b32 s50, s50, 7
v_lshlrev_b32 v3, 4, v2
""")
    if MAP == 1:
        a("s_mov_b32 s48, s29\ns_mov_b32 s49, s28\ns_and_b32 s50, s29, 7")
    if MAP == 2:
        a("""s_lshr_b32 s48, s28, 2
s_lshl_b32 s48, s48, 4
s_lshr_b32 s50, s29, 1
s_add_u32 s48, s48, s50
s_and_b32 s49, s28, 3
s_lshl_b32 s49, s49, 1
s_and_b32 s51, s29, 1
s_add_u32 s49, s49, s51
s_lshl_b32 s51, s51, 2
s_add_u32 s50, s50, s51
s_and_b32 s50, s50, 7""")
    a("""
s_cmp_lt_u32 s27, 4
s_cbranch_scc1 P1_COMPUTE
""")
    a(f"""
s_sub_u32 s51, s27, 4
s_and_b32 s52, s51, 1
s_lshl_b32 s57, s48, 16
s_lshl_b32 s58, s52, 15
s_add_u32 s57, s57, s58
s_mul_i32 s58, s52, {32*3072}
s_lshl_b32 s59, s49, 7
s_add_u32 s58, s58, s59
v_lshrrev_b32 v4, 3, v2
v_and_b32 v5, 7, v2
v_lshrrev_b32 v6, 1, v4
v_xor_b32 v6, v5, v6
v_lshlrev_b32 v6, 4, v6
v_lshl_add_u32 v6, v4, 10, v6
v_add_u32 v8, s57, v6
v_xor_b32 v9, 64, v8
v_lshlrev_b32 v7, 1, v4
v_and_b32 v7, 4, v7
v_xor_b32 v5, v5, v7
v_lshlrev_b32 v5, 4, v5
v_mul_u32_u24 v4, 3072, v4
v_add3_u32 v10, v4, v5, s58
s_cmp_lt_u32 s51, 2
s_cselect_b64 vcc, -1, 0
s_mov_b32 s56, 0x30000
s_cmovk_i32 s56, 128
s_mov_b32 s38, 0x180000
s_cmov_b32 s38, 0x200000
s_movk_i32 s60, {8*3072-1024}
s_cmovk_i32 s60, 7168
s_movk_i32 s59, {SEC_A*1024}
s_cmovk_i32 s59, 0
s_mov_b32 s39, 0x00020000
v_cndmask_b32 v8, v10, v8, vcc
v_cndmask_b32 v9, v10, v9, vcc
s_lshl_b32 s61, s51, 12
s_mov_b32 s62, 0
s_mov_b32 s53, s50
s_mov_b32 s55, {sum(1 << (g+LA) for g in GROUPS):#x}
s_mov_b32 s65, {WS_E:#x}
s_mov_b32 s54, 1
s_waitcnt lgkmcnt(0)
s_cselect_b32 s36, s4, s6
s_cselect_b32 s37, s5, s7
s_load_dword s26, s[24:25], s65
P1_LD_LOOP:
s_bitcmp1_b32 s55, s62
s_cbranch_scc0 P1_LD_ISSUE
s_waitcnt vmcnt({4*(LA-1)}) lgkmcnt(0)
s_barrier
P1_LD_ISSUE:
s_and_b32 s64, s62, 7
s_lshl_b32 s64, s64, 14
s_add_u32 m0, s64, s61
s_and_b32 s63, s53, 7
s_mul_i32 s63, s63, s56
s_add_u32 s63, s63, s59
""")
    for i in range(4):
        a(f"buffer_load_dwordx4 v{8+(i&1)}, s[36:39], s63 offen offset:{i*1024} lds")
        if i != 3: a("s_add_u32 s63, s63, s60")
    a(f"""
s_add_u32 s53, s53, s54
s_add_u32 s62, s62, 1
s_cmp_eq_u32 s62, 8
s_cbranch_scc0 P1_LD_N8
s_mov_b32 s36, s6
s_mov_b32 s37, s7
s_mov_b32 s38, 0x180000
s_mov_b32 s56, 0x30000
s_movk_i32 s60, {8*3072-1024}
s_movk_i32 s59, {SEC_B*1024}
v_mov_b32 v8, v10
v_mov_b32 v9, v10
s_lshr_b32 s53, s51, 1
s_add_u32 s53, s53, s50
s_mov_b32 s54, 2
P1_LD_N8:
s_cmp_eq_u32 s62, 12
s_cmovk_i32 s59, {SEC_C*1024}
s_cmp_lt_u32 s62, 16
s_cbranch_scc1 P1_LD_LOOP
""")
    srd(a, 32, 24, WS_SIZE)
    a("""
s_mul_i32 s26, s26, 0x9e3779b1
s_add_u32 s26, s26, 0x7f4a7c15
s_cmp_eq_u32 s51, 1
s_cbranch_scc1 P1_RG
""")
    for g in GROUPS:
        if g + LA >= 16: a(f"s_waitcnt vmcnt({4*(15-g)})\ns_barrier")
    a("s_branch P2_SETUP\nP1_RG:")
    X = 128; WR = 160; WGT = 164; P = 168
    srd(a, 36, 4, 0x200000); srd(a, 40, 12, 1024); srd(a, 44, 20, 1024)
    a(f"""
s_lshl_b32 s66, s48, 3
s_add_u32 s66, s66, s49
s_lshl_b32 s53, s66, 13
s_add_u32 s54, s53, 4096
v_mov_b32 v{P}, 0
s_lshl_b32 s55, s2, 8
s_add_u32 s55, s55, {WS_Y:#x}
v_lshlrev_b32 v7, 2, v2
buffer_store_dword v{P}, v7, s[32:35], s55 offen sc1
""")
    a(f"buffer_load_dwordx4 {vr(WR,4)}, v3, s[40:43], 0 offen")
    a(f"buffer_load_dwordx4 {vr(WGT,4)}, v3, s[44:47], 0 offen")
    for i in range(8):
        a(f"buffer_load_dwordx4 {vr(X+4*i,4)}, v3, s[36:39], s{53 if i < 4 else 54} offen offset:{(i%4)*1024}")
    for g in GROUPS:
        if g + LA >= 16: a(f"s_waitcnt vmcnt({4*(15-g)+11})\ns_barrier")
    for i in range(8): a(f"v_mov_b64 {vr(P+2*i,2)}, 0")
    a(f"""
v_and_b32 v6, 1, v2
v_cmp_eq_u32 vcc, 0, v6
v_and_b32 v6, 2, v2
v_cmp_eq_u32 s[56:57], 0, v6
v_and_b32 v24, 3, v2
v_bfe_u32 v7, v2, 4, 1
v_lshl_add_u32 v24, v7, 2, v24
s_lshl_b32 s53, s66, 3
v_add_u32 v24, s53, v24
s_waitcnt vmcnt(0)
""")
    for k in range(4):
        for i in range(8):
            a(f"v_dot2c_f32_bf16 v{P+i}, v{X+4*i+k}, v{WR+k}")
            a(f"v_dot2c_f32_bf16 v{P+8+i}, v{X+4*i+k}, v{WGT+k}")
    a("s_nop 2")
    for i in range(8): a(f"v_permlane32_swap_b32 v{P+i}, v{P+8+i}")
    a("s_nop 1")
    for i in range(8): a(f"v_add_f32 v{P+i}, v{P+i}, v{P+8+i}")
    a("s_nop 1")
    for i in range(4): a(f"v_permlane16_swap_b32 v{P+i}, v{P+4+i}")
    a("s_nop 1")
    for i in range(4): a(f"v_add_f32 v{P+i}, v{P+i}, v{P+4+i}")
    for pat in ("row_ror:8", "row_ror:4", "row_ror:2", "row_ror:1"):
        for i in range(4): a(f"v_add_f32_dpp v{P+i}, v{P+i}, v{P+i} {pat} row_mask:0xf bank_mask:0xf")
    a(f"""
v_cndmask_b32 v{P}, v{P+1}, v{P}, vcc
v_cndmask_b32 v{P+2}, v{P+3}, v{P+2}, vcc
v_cndmask_b32 v{P}, v{P+2}, v{P}, s[56:57]
v_cvt_pk_bf16_f32 v{P}, v{P}, v{P}
v_and_b32 v{P}, 0xffff0000, v{P}
v_mul_f32 v28, {f32bits(-LOG2E):#x}, v{P}
v_exp_f32 v28, v28
v_ashrrev_i32 v26, 31, v{P}
v_or_b32 v26, 0x80000000, v26
v_add_f32 v28, 1.0, v28
v_rcp_f32 v28, v28
v_xor_b32 v26, v{P}, v26
v_and_b32 v26, 0xffff0000, v26
v_sub_u32 v7, 0x7ff, v24
v_or_b32 v26, v26, v7
v_cvt_pk_bf16_f32 v28, v28, v28
v_and_b32 v28, 0xffff0000, v28
v_mov_b32 v29, s26
v_lshlrev_b32 v24, 3, v24
s_mov_b32 s53, {WS_G:#x}
s_mov_b32 exec_lo, 0
s_mov_b32 exec_hi, 0x000f000f
buffer_store_dwordx2 v[28:29], v24, s[32:35], s53 offen sc1
s_mov_b32 exec_hi, -1
v_mov_b32 v26, 0
s_mov_b32 exec_lo, -1
""")
    umax_reduce64(a, 26, 27)
    a(f"""
v_mov_b32 v27, s26
v_mov_b32 v7, 0
s_lshl_b32 s53, s66, 3
s_add_u32 s53, s53, {WS_KG:#x}
s_mov_b64 exec, 1
buffer_store_dwordx2 v[26:27], v7, s[32:35], s53 offen sc1
s_mov_b64 exec, -1
s_branch P2_SETUP
""")
    XR = 128; WB = 64; ACC = [32, 48]
    a(f"""
P1_COMPUTE:
""")
    if E("CPF", 0):
        a("""
s_getpc_b64 s[60:61]
L_PC:
s_lshl_b32 s62, s29, 2
s_add_u32 s62, s62, s27
s_lshl_b32 s62, s62, 8
s_min_u32 s62, s62, L_CODE_END - L_PC - 256
""")
    a(f"""
s_and_b32 s51, s27, 1
s_lshr_b32 s52, s27, 1
s_mov_b32 s65, {WS_E:#x}
v_mov_b32 v21, 0
v_lshrrev_b32 v4, 5, v2
v_and_b32 v5, 31, v2
v_bfe_u32 v6, v2, 1, 3
v_xor_b32 v6, v6, v4
v_lshlrev_b32 v6, 4, v6
s_lshl_b32 s53, s51, 12
v_lshl_add_u32 v6, v5, 7, v6
v_add_u32 v10, s53, v6
v_xor_b32 v11, 32, v10
v_xor_b32 v12, 64, v10
v_xor_b32 v13, 0x60, v10
v_bfe_u32 v6, v2, 2, 2
v_lshl_add_u32 v7, v4, 3, v6
v_lshlrev_b32 v7, 7, v7
v_lshrrev_b32 v6, 1, v6
v_xor_b32 v6, s52, v6
v_lshl_add_u32 v7, v6, 6, v7
v_bfe_u32 v6, v2, 4, 1
v_lshl_add_u32 v7, v6, 5, v7
v_and_b32 v6, 3, v2
v_lshl_add_u32 v14, v6, 3, v7
v_add_u32 v15, 0x10000, v14
v_add_u32 v16, 0x10000, v10
v_add_u32 v17, 0x10000, v11
v_add_u32 v18, 0x10000, v12
v_add_u32 v19, 0x10000, v13
s_waitcnt lgkmcnt(0)
""")
    if E("CPF", 0): a("s_load_dword s63, s[60:61], s62\ns_load_dword s63, s[60:61], s62 offset:128")
    srd(a, 32, 24, WS_SIZE)
    a("buffer_load_dword v21, v21, s[32:35], s65 offen")
    if E("WPF", 0):
        a("s_cmp_lt_u32 s27, 2\ns_cbranch_scc1 P1_NOPF")
        srd(a, 36, 6, 0x180000)
        a(f"""s_mul_i32 s53, s50, 0x30000
s_lshl_b32 s54, s49, 7
s_add_u32 s53, s53, s54
s_cmp_eq_u32 s27, 2
s_cselect_b32 s54, {SEC_B*1024}, {SEC_C*1024}
s_add_u32 s53, s53, s54
v_mul_u32_u24 v31, 3072, v2
buffer_load_dword v31, v31, s[36:39], s53 offen
P1_NOPF:""")
    a(f"v_mov_b32 v6, {L_MISC+4:#x}\nv_mov_b32 v7, 0\nds_write_b32 v6, v7")
    a(f"""
s_lshl_b32 s53, s48, 1
s_add_u32 s53, s53, s51
s_lshl_b32 s54, s49, 2
s_lshl_b32 s55, s52, 1
s_add_u32 s54, s54, s55
s_lshl_b32 s59, s53, 11
s_lshl_b32 s57, s54, 17
s_add_u32 s59, s59, s57
s_add_u32 s59, s59, {WS_KV:#x}
s_add_u32 s60, s59, 0x20000
s_lshl_b32 s54, s49, 5
s_add_u32 s54, s54, s48
s_lshl_b32 s54, s54, {FSH}
s_add_u32 s54, s54, {WS_F1:#x}
s_mov_b32 s64, {f32bits(QSCALE):#x}
s_mov_b32 s65, {f32bits(QSCALE):#x}
v_and_b32 v6, 0x33, v2
v_and_b32 v7, 4, v2
v_lshl_or_b32 v6, v7, 1, v6
v_and_b32 v7, 8, v2
v_lshrrev_b32 v7, 1, v7
v_or_b32 v6, v6, v7
v_lshlrev_b32 v22, 4, v6
v_and_b32 v6, 0x2f, v2
v_lshlrev_b32 v6, 4, v6
v_bfe_u32 v7, v2, 4, 1
v_lshl_add_u32 v23, v7, 17, v6
s_lshl_b32 s56, s52, 12
s_lshl_b32 s57, s51, 10
s_add_u32 s56, s56, s57
s_add_u32 s56, s56, {L_Q:#x}
v_add_u32 v1, s56, v3
""")
    stamp(a, 0)
    NWB = 12
    steps = []
    for n in range(16):
        if n < 8:
            for s in range(4): steps.append((n, 0, 4*n+s, 0x2000 + s*2048))
        else:
            m = n & 3
            for s in range(8): steps.append((n, 1 if n < 12 else 2, 8*m+s, s*2048))
    def rd(idx):
        n, p, ks, wo = steps[idx]
        slot = n & 7; hi = slot >= 4; so = (slot & 3) * 0x4000
        wb = WB + 4*(idx % NWB)
        r = []
        if p == 0: r.append(f"ds_read_b128 {vr(XR+4*ks,4)}, v{(16 if hi else 10)+(ks&3)} offset:{so}")
        for jj in range(2): r.append(f"ds_read_b64_tr_b16 {vr(wb+2*jj,2)}, v{15 if hi else 14} offset:{so+wo+jj*512}")
        return r
    def mf(idx):
        n, p, ks, wo = steps[idx]
        wb = vr(WB + 4*(idx % NWB), 4); x = vr(XR+4*ks, 4); acc = vr(ACC[p & 1], 16)
        c = acc if ks else "0"
        return f"v_mfma_f32_32x32x16_bf16 {acc}, {x}, {wb}, {c}" if p == 1 else f"v_mfma_f32_32x32x16_bf16 {acc}, {wb}, {x}, {c}"
    PK = 112
    def epi(p):
        A_ = ACC[p & 1]
        if p == 2:
            for i in range(8): a(f"v_pk_mul_f32 {vr(A_+2*i,2)}, {vr(A_+2*i,2)}, s[64:65]")
        o = PK + (8 if p else 0)
        for i in range(8): a(f"v_cvt_pk_bf16_f32 v{o+i}, v{A_+2*i}, v{A_+1+2*i}")
        if p == 0:
            a(f"buffer_store_dwordx4 {vr(o,4)}, v22, s[32:35], s59 offen sc1\nbuffer_store_dwordx4 {vr(o+4,4)}, v22, s[32:35], s60 offen sc1")
        elif p == 1:
            a(f"buffer_store_dwordx4 {vr(o,4)}, v23, s[32:35], s59 offen offset:1024 sc1\nbuffer_store_dwordx4 {vr(o+4,4)}, v23, s[32:35], s59 offen offset:1280 sc1")
        else:
            a(f"ds_write_b128 v1, {vr(o,4)}\nds_write_b128 v1, {vr(o+4,4)} offset:2048")
    first_of_group = {}
    prev = -1
    for g in GROUPS:
        first_of_group[min(i for i, st in enumerate(steps) if st[0] == prev+1)] = g
        prev = g
    lq = []
    nb = 0
    FB = E("FB", 13)
    def issue(i):
        nonlocal nb
        if i >= len(steps): return
        if i in first_of_group:
            g = first_of_group[i]
            if g == FB + (1 if FB + 1 in GROUPS else 2) or False: pass
            if g == FLAGAT:
                if E("PST", 0) == 2: stamp(a, 1); lq.clear()
                a("s_waitcnt vmcnt(0)")
            a("s_barrier")
            if nb == 0: stamp(a, 1)
            PS_ = {1: {4: 5, 8: 6, 12: 8}, 2: {10: 5, 12: 6, 15: 8}}.get(E("PST", 0), {})
            if steps[i][0] in PS_: stamp(a, PS_[steps[i][0]])
            if STAMP and (nb == 0 or steps[i][0] in PS_): lq.clear()
            if g == FLAGAT:
                a("""
s_cmp_lg_u32 s27, 0
s_cbranch_scc1 P1_NOKG
s_mov_b64 exec, 1
buffer_store_dword v27, v7, s[32:35], s54 offen sc1
s_mov_b64 exec, -1
P1_NOKG:
""")
                stamp(a, 3)
                if STAMP: lq.clear()
            nb += 1
        for x in rd(i):
            a(x); lq.append(i)
    for i in range(min(DIST, 4)): issue(i)
    nxt = min(DIST, 4)
    for i in range(len(steps)):
        while nxt <= i + DIST and nxt < len(steps) and len([x for x in lq if x >= i]) + len(rd(nxt)) <= 15:
            issue(nxt); nxt += 1
        rem = len([x for x in lq if x > i])
        if any(x <= i for x in lq):
            a(f"s_waitcnt lgkmcnt({rem})")
            lq[:] = [x for x in lq if x > i]
        a(mf(i))
        if i == 16:
            a("""
s_waitcnt vmcnt(0)
v_readfirstlane_b32 s26, v21
v_mov_b32 v7, 0
s_nop 2
s_mul_i32 s26, s26, 0x9e3779b1
s_add_u32 s26, s26, 0x7f4a7c15
v_mov_b32 v27, s26
""")
        if i in (32+3, 64+3):
            epi(0 if i < 64 else 1)
    if E("PST", 0) == 2: stamp(a, 0)
    a("s_nop 11")
    epi(2)
    stamp(a, 2)
    Q0, Q1, S0, S1, O0, O1, M0, M1, T = 4, 8, 16, 32, 48, 64, 80, 96, 112
    FS = [192 - 12*NS + 12*i + 64 for i in range(NS)]
    FW = 3
    a(f"""
P2_SETUP:
s_and_b32 s51, s27, 3
s_lshr_b32 s52, s27, 2
s_lshl_b32 s53, s49, 2
s_add_u32 s53, s53, s51
s_lshl_b32 s54, s53, 17
s_add_u32 s54, s54, {WS_KV:#x}
s_lshl_b32 s57, s52, 16
{ROTI}
s_add_u32 s57, s57, s55
s_and_b32 s57, s57, 0x1ffff
v_mov_b32 v12, 0xdddddddd
v_and_b32 v14, 27, v2
v_cmp_eq_u32 vcc, 16, v14
v_mov_b32 v15, 0x3f803f80
s_mov_b32 s58, 0xffff
s_mov_b32 s59, 0xffff
v_cndmask_b32 v14, 0, v15, vcc
v_mov_b32 v15, v14
s_lshl_b32 s56, s51, 11
s_add_u32 s56, s56, {L_Q:#x}
v_add_u32 v13, s56, v3
""")
    for F in FS:
        for i in range(4): a(f"v_mov_b64 {vr(F+4+2*i,2)}, v[14:15]")
    vq = []
    def ld(t):
        F = FS[t % NS]; r = []
        if t % 2 == 0:
            r += ["s_add_u32 s64, s54, s57", "s_add_u32 s57, s57, 4096", "s_and_b32 s57, s57, 0x1ffff"]
        o = (t % 2) * 2048
        r += [f"buffer_load_dwordx4 {vr(F,4)}, v3, s[32:35], s64 offen offset:{o} sc1", "s_mov_b64 exec, s[58:59]",
              f"buffer_load_dwordx4 {vr(F+4,4)}, v3, s[32:35], s64 offen offset:{o+1024} sc1",
              f"buffer_load_dwordx4 {vr(F+8,4)}, v3, s[32:35], s64 offen offset:{o+1280} sc1", "s_mov_b64 exec, -1"]
        vq.extend([("t", t)]*3)
        return r
    def wait_tile(t):
        last = max(i for i, x in enumerate(vq) if x == ("t", t))
        return f"s_waitcnt vmcnt({len(vq)-1-last})"
    a(f"""
s_cmp_lg_u32 s27, 4
s_cbranch_scc1 P2_BQ
s_lshl_b32 s64, s49, {5+FSH}
s_add_u32 s64, s64, {WS_F1:#x}
v_and_b32 v4, 31, v2
v_lshlrev_b32 v4, {FSH}, v4
s_mov_b32 s65, {POLL_MAX}
P2_POLL:
buffer_load_dword v5, v4, s[32:35], s64 offen sc1
s_sub_u32 s65, s65, 1
s_cbranch_scc1 P2_BQ
s_waitcnt vmcnt(0)
v_cmp_ne_u32 vcc, s26, v5
s_cbranch_vccz P2_BQ
s_sleep {SL1}
s_branch P2_POLL
P2_BQ:
s_waitcnt lgkmcnt(0)
s_barrier
""")
    stamp(a, 4)
    for t in range(NS-1):
        for x in ld(t): a(x)
    a(f"""
ds_read_b128 {vr(Q0,4)}, v13
ds_read_b128 {vr(Q1,4)}, v13 offset:1024
""")
    a(f"""
s_min_u32 s60, s29, 27
s_mul_i32 s61, s28, 28
s_add_u32 s60, s60, s61
s_lshl_b32 s63, s27, 10
v_lshrrev_b32 v{T+1}, 3, v2
v_and_b32 v{T+2}, 7, v2
v_lshlrev_b32 v{T+3}, 1, v{T+1}
v_and_b32 v{T+3}, 4, v{T+3}
v_xor_b32 v{T+2}, v{T+2}, v{T+3}
v_lshlrev_b32 v{T+2}, 4, v{T+2}
v_mul_u32_u24 v{T}, 3584, v{T+1}
v_add_u32 v{T}, v{T}, v{T+2}
v_lshl_add_u32 v{T+1}, v{T+1}, 10, v{T+2}
s_lshl_b32 s70, s49, 7
s_lshl_b32 s71, s27, 13
s_add_u32 s70, s70, s71
s_lshr_b32 s77, s27, 1
s_cmp_gt_u32 s29, 27
s_cselect_b32 s76, 0, s27
s_cselect_b32 s77, 0, s77
s_cselect_b32 s78, 0, 1
s_cmp_gt_u32 s27, 3
s_cselect_b32 s78, 0, s78
s_lshl_b32 s61, s28, 3
s_add_u32 s61, s61, s27
s_mul_i32 s61, s61, {8*3584}
s_lshl_b32 s62, s29, 7
s_add_u32 s61, s61, s62
s_and_b32 s67, s27, 1
s_lshl_b32 s68, s67, 9
s_lshl_b32 s62, s60, 13
s_add_u32 s62, s62, s68
s_lshl_b32 s68, s67, 12
s_add_u32 s68, s68, {L_FD:#x}
v_lshrrev_b32 v{T+6}, 5, v2
v_lshl_add_u32 v{T+6}, v{T+6}, 9, v3
""")
    for i in range(16): a(f"v_mov_b64 {vr(O0+2*i,2)}, 0")
    srd(a, 36, 14, 512*3584); srd(a, 40, 16, 512*3584); srd(a, 44, 18, 512*3584); srd(a, 72, 8, 0x80000)
    a(f"""
{wait_tile(0)} lgkmcnt(0)
v_mfma_f32_32x32x16_bf16 {vr(S0,16)}, {vr(FS[0],4)}, {vr(Q0,4)}, 0
v_mfma_f32_32x32x16_bf16 {vr(S1,16)}, {vr(FS[0],4)}, {vr(Q1,4)}, 0
s_nop 10
""")
    if not E("PST", 0): stamp(a, 5)
    for S, M, t in ((S0, M0, T+2), (S1, M1, T+4)):
        a(f"v_max3_f32 v{t}, v{S}, v{S+1}, v{S+2}")
        for i in range(6): a(f"v_max3_f32 v{t}, v{t}, v{S+3+2*i}, v{S+4+2*i}")
        a(f"v_max_f32 v{t}, v{t}, v{S+15}\nv_mov_b32 v{t+1}, v{t}\ns_nop 1\nv_permlane32_swap_b32 v{t+1}, v{t}\ns_nop 1")
        a(f"v_max_f32 v{t}, v{t}, v{t+1}\nv_mul_f32 v{M}, -1.0, v{t}\nv_mul_f32 v{M+1}, -1.0, v{t}")
        for i in range(1, 8): a(f"v_mov_b64 {vr(M+2*i,2)}, {vr(M,2)}")
        if S == S0:
            a(f"s_nop 1\nv_mfma_f32_32x32x16_bf16 {vr(S0,16)}, {vr(FS[0],4)}, {vr(Q0,4)}, {vr(M0,16)}")
    def smf(o, v, p): return f"v_smfmac_f32_32x32x32_bf16 {vr(o,16)}, {vr(v,4)}, {vr(p,8)}, v12"
    def qk(d, k, q, mn): return f"v_mfma_f32_32x32x16_bf16 {vr(d,16)}, {vr(k,4)}, {vr(q,4)}, {vr(mn,16)}"
    if not E("PST", 0): stamp(a, 6)
    stampc(a, 7)
    prio_at = {0: 3, E("P2", 36): 2, E("P1", 56): 1, E("P0", 62): 0}
    KG = T+8
    extras = {}
    def addx(u, lines, nv=0): extras.setdefault(u, []).append((lines, nv))
    def hook(u, reg, val, lab): addx(u, [f"s_cmp_eq_u32 {reg}, {val}", f"s_cbranch_scc1 {lab}", f"{lab}_RET:"])
    U1 = E("U1", 1); SP = E("SP", 3); UK = U1 + 10; UC = U1 + 3*SP + 2*NS; US1 = E("US1", 23); US2 = E("US2", 24)
    assert UC < US1 and UK + 10 <= US1
    hook(U1, "s27", 1, "FW_LD")
    hook(UK, "s27", 1, "FW_KEYS")
    hook(US1, "s76", 1, "FW_S1")
    hook(US2, "s77", 3, "FW_S2A")
    hook(US2+8, "s77", 3, "FW_S2")
    hook(US2+20, "s77", 3, "FW_F3")
    for k in range(4):
        srdn, ldsb = [(36, L_FG), (40, L_FG+0x2000)][k & 1]
        half = k >> 1
        addx(U1 + SP*k, ["s_cmp_eq_u32 s78, 0", f"s_cbranch_scc1 FWS{k}", f"s_add_u32 m0, s63, {ldsb + half*0x1000:#x}", f"s_add_u32 s65, s61, {half*32*3584}",
                         f"buffer_load_dwordx4 v{T}, s[{srdn}:{srdn+3}], s65 offen lds", f"FWS{k}:"])
        addx(2 + 2*k, ["s_cmp_lg_u32 s77, 3", f"s_cbranch_scc1 FWD{k}", f"s_add_u32 m0, s68, {k*0x400:#x}", f"s_add_u32 s65, s62, {k*2048}",
                         f"buffer_load_dwordx4 v{T+6}, s[44:47], s65 offen lds", f"FWD{k}:"])
    addx(UC, ["s_cmp_eq_u32 s78, 0", "s_cbranch_scc1 FWSC", f"v_mov_b32 v{T+2}, {L_MISC+4:#x}", f"v_mov_b32 v{T+3}, 1", "s_mov_b64 exec, 1", f"ds_add_u32 v{T+2}, v{T+3}", "s_mov_b64 exec, -1", "FWSC:"])
    for g in range(8):
        addx(E('UWO', 27) + 4*g, [f"s_add_u32 m0, s63, {L_WO + g*0x2000:#x}", f"s_add_u32 s65, s70, {g*0x10000:#x}", f"buffer_load_dwordx4 v{T+1}, s[72:75], s65 offen lds"], 1)
    for kt in range(32):
        F = FS[kt % NS]; Fp = FS[(kt-1) % NS]; Fn = FS[(kt+1) % NS]
        for q in range(2):
            u = 2*kt+q
            cur, nxt = (S0, S1) if q == 0 else (S1, S0)
            Oc, On = (O0, O1) if q == 0 else (O1, O0)
            if u in prio_at: a(f"s_setprio {prio_at[u]}")
            if E("QST", 0) and u in (8, 16, 24, 32): stamp(a, {8: 0, 16: 1, 24: 2, 32: 3}[u])
            for i in range(16):
                if i == 2:
                    if u: a(smf(On, (Fp if q == 0 else F) + 8, nxt + 8))
                    if q == 0 and kt + NS - 1 < 32:
                        for x in ld(kt + NS - 1): a(x)
                if i == PQ and u != 63:
                    if q == 1:
                        a(wait_tile(kt+1))
                    a(qk(nxt, F if q == 0 else Fn, Q1 if q == 0 else Q0, M1 if q == 0 else M0))
                if i == 8 and u in extras:
                    for lines, nv in extras[u]:
                        for x in lines: a(x)
                        vq.extend([("x", u)]*nv)
                if i == PS: a(smf(Oc, F + 4, cur))
                a(f"v_exp_f32 v{cur+i}, v{cur+i}")
    FL = FS[31 % NS]; FA = FS[0]
    a(f"s_nop 1\n{smf(O1, FL+8, S1+8)}")
    stampc(a, 7)
    if not E("PST", 0): stamp(a, 8)
    a(f"""
s_lshl_b32 s64, s27, 11
s_xor_b32 s65, s64, 0x2000
v_add_u32 v14, s64, v3
v_add_u32 v15, s65, v3
s_lshr_b32 s64, s64, 2
s_lshr_b32 s65, s65, 2
v_lshlrev_b32 v{T+2}, 3, v2
v_add_u32 v{T+3}, s65, v{T+2}
v_add_u32 v{T+2}, s64, v{T+2}
v_add_u32 v14, {L_OX:#x}, v14
v_add_u32 v15, {L_OX:#x}, v15
v_add_u32 v{T+2}, {L_LS:#x}, v{T+2}
v_add_u32 v{T+3}, {L_LS:#x}, v{T+3}
v_mov_b32 v{O0+9}, v{M0}
v_mov_b32 v{O1+9}, v{M1}
s_cmp_eq_u32 s52, 0
s_cbranch_scc1 P2_X0
ds_write_b128 v14, {vr(O0,4)}
ds_write_b128 v14, {vr(O0+4,4)} offset:1024
ds_write_b64 v{T+2}, {vr(O0+8,2)}
""")
    for i in range(5): a(f"v_mov_b64 {vr(O0+2*i,2)}, {vr(O1+2*i,2)}")
    for i in range(2): a(f"v_mov_b64 {vr(Q0+2*i,2)}, {vr(Q1+2*i,2)}")
    a(f"""
s_branch P2_X1
P2_X0:
ds_write_b128 v14, {vr(O1,4)}
ds_write_b128 v14, {vr(O1+4,4)} offset:1024
ds_write_b64 v{T+2}, {vr(O1+8,2)}
P2_X1:
s_lshl_b32 s55, s48, 1
s_add_u32 s55, s55, s52
s_lshl_b32 s55, s55, 5
s_add_u32 s55, s55, s53
s_lshl_b32 s56, s55, 10
s_add_u32 s56, s56, {WS_OF:#x}
s_lshl_b32 s66, s48, {3+FSH}
s_add_u32 s66, s66, {WS_F2:#x}
s_lshl_b32 s55, s49, {FSH}
s_add_u32 s55, s55, s66
s_waitcnt lgkmcnt(0)
s_barrier
ds_read_b64 {vr(S0+8,2)}, v{T+3}
ds_read_b128 {vr(S0,4)}, v15
ds_read_b128 {vr(S0+4,4)}, v15 offset:1024
s_mov_b32 s68, 0
s_waitcnt lgkmcnt(2)
v_min_f32 v{T+4}, v{O0+9}, v{S0+9}
v_sub_f32 v{T+5}, v{T+4}, v{O0+9}
v_sub_f32 v{T+6}, v{T+4}, v{S0+9}
v_exp_f32 v{T+5}, v{T+5}
v_exp_f32 v{T+6}, v{T+6}
v_add_f32 v{T+7}, v{O0+8}, v{S0+8}
v_mul_f32 v{O0+8}, v{O0+8}, v{T+5}
v_cmp_ngt_f32 vcc, {f32bits(2.0**40):#x}, v{T+7}
v_fmac_f32 v{O0+8}, v{S0+8}, v{T+6}
v_rcp_f32 v{T+2}, v{O0+8}
s_mov_b64 s[64:65], vcc
v_mul_f32 v{T+5}, v{T+5}, v{T+2}
v_mul_f32 v{T+6}, v{T+6}, v{T+2}
s_waitcnt lgkmcnt(0)
""")
    for i in range(8): a(f"v_mul_f32 v{O0+i}, v{O0+i}, v{T+5}")
    for i in range(8): a(f"v_fmac_f32 v{O0+i}, v{S0+i}, v{T+6}")
    a(f"""
v_add_f32 v{T+3}, |v{O0}|, |v{O0+1}|
v_add_f32 v{T+4}, |v{O0+2}|, |v{O0+3}|
v_add_f32 v{T+5}, |v{O0+4}|, |v{O0+5}|
v_add_f32 v{T+6}, |v{O0+6}|, |v{O0+7}|
v_add_f32 v{T+3}, v{T+3}, v{T+4}
v_add_f32 v{T+5}, v{T+5}, v{T+6}
v_add_f32 v{T+3}, v{T+3}, v{T+5}
v_cmp_ngt_f32 vcc, 0x7f800000, v{T+3}
s_or_b64 vcc, vcc, s[64:65]
s_cbranch_vccnz P2_FALLBACK
P2_STORE:
""")
    for i in range(4): a(f"v_cvt_pk_bf16_f32 v{S0+i}, v{O0+2*i}, v{O0+2*i+1}")
    a(f"""
buffer_store_dwordx4 {vr(S0,4)}, v3, s[32:35], s56 offen sc1
v_mov_b32 v{T+2}, s26
v_mov_b32 v{T+3}, 0
s_add_u32 s69, s30, s31
s_and_b32 s69, s69, 3
s_cmp_lt_u32 s27, 4
s_cbranch_scc1 P3_COMPUTE
s_and_b32 s70, s51, 1
s_lshl_b32 s71, s48, 1
s_add_u32 s71, s71, s70
v_and_b32 v4, 7, v2
v_lshlrev_b32 v4, {FSH}, v4
s_mov_b32 s68, {POLL_MAX}
s_lshl_b32 s71, s71, 15
s_lshr_b32 s67, s51, 1
s_lshl_b32 s67, s67, 12
s_add_u32 s71, s71, s67
s_add_u32 s71, s71, {WS_OF:#x}
s_lshl_b32 s70, s70, 13
s_add_u32 s70, s70, s67
s_waitcnt vmcnt(0)
s_barrier
""")
    stamp(a, 9)
    a(f"""
P3_POLL:
s_sleep {SL2}
buffer_load_dword v5, v4, s[32:35], s66 offen sc1
s_sub_u32 s68, s68, 1
s_cbranch_scc1 P3_POLLED
s_waitcnt vmcnt(0)
v_cmp_ne_u32 vcc, s26, v5
s_cbranch_vccnz P3_POLL
P3_POLLED:
""")
    stamp(a, 10)
    for n in range(4):
        a(f"""s_add_u32 s64, s69, {n}
s_and_b32 s64, s64, 3
s_lshl_b32 s65, s64, 14
s_add_u32 s65, s65, s70
s_add_u32 m0, s65, {L_OF:#x}
s_lshl_b32 s64, s64, 13
s_add_u32 s64, s64, s71""")
        for i in range(4): a(f"buffer_load_dwordx4 v3, s[32:35], s64 offen offset:{i*1024} sc1 lds")
    for n in range(4): a(f"s_waitcnt vmcnt({12-4*n})\ns_barrier")
    endpgm(a)
    ACC3 = 64; X = 80; Y = 88; FR = 16; T3 = 104; B = 48
    a(f"""
P3_COMPUTE:
s_and_b32 s70, s27, 1
s_lshr_b32 s71, s27, 1
v_lshrrev_b32 v4, 5, v2
v_and_b32 v5, 31, v2
s_lshl_b32 s66, s48, 6
s_lshl_b32 s67, s70, 5
s_add_u32 s66, s66, s67
v_add_u32 v12, s66, v5
s_lshl_b32 s67, s49, 6
s_lshl_b32 s60, s71, 5
s_add_u32 s67, s67, s60
v_lshl_add_u32 v13, v4, 4, s67
v_lshlrev_b32 v14, 10, v12
v_lshl_add_u32 v14, v13, 1, v14
v_lshlrev_b32 v15, 3, v12
v_lshlrev_b32 v13, 2, v13
v_mov_b32 v6, {L_MISC:#x}
ds_read_b32 v{T3}, v6
""")
    srd(a, 40, 4, 0x200000)
    srd(a, 44, 22, 0x200000)
    a(f"""
s_mov_b32 s60, {WS_G:#x}
s_waitcnt vmcnt(0)
s_barrier
s_cmp_lg_u32 s27, 0
s_cbranch_scc1 P3_NOF2
s_mov_b64 exec, 1
buffer_store_dword v{T+2}, v{T+3}, s[32:35], s55 offen sc1
s_mov_b64 exec, -1
P3_NOF2:
""")
    stamp(a, 9)
    a(f"""
buffer_load_dwordx2 {vr(T3+6,2)}, v15, s[32:35], s60 offen sc1
buffer_load_dwordx4 {vr(X,4)}, v14, s[40:43], 0 offen
buffer_load_dwordx4 {vr(X+4,4)}, v14, s[40:43], 0 offen offset:16
s_lshl_b32 s66, s70, 13
s_add_u32 s66, s66, {L_OF:#x}
v_add_u32 v10, s66, v3
v_bfe_u32 v6, v2, 2, 2
v_lshl_add_u32 v7, v4, 2, v6
v_lshlrev_b32 v7, 7, v7
v_lshrrev_b32 v6, 1, v6
v_xor_b32 v6, s71, v6
v_lshl_add_u32 v7, v6, 6, v7
v_and_b32 v6, 1, v2
v_lshl_add_u32 v7, v6, 5, v7
v_bfe_u32 v6, v2, 4, 1
v_lshl_add_u32 v7, v6, 4, v7
v_bfe_u32 v6, v2, 1, 1
v_lshl_add_u32 v11, v6, 3, v7
""")
    for i in range(8): a(f"v_mov_b64 {vr(ACC3+2*i,2)}, 0")
    a(f"""
s_waitcnt lgkmcnt(0)
v_and_b32 v{T3+2}, 0x7ff, v{T3}
v_sub_u32 v{T3+2}, 0x7ff, v{T3+2}
v_cmp_eq_u32 s[76:77], v{T3+2}, v12
v_and_b32 v{T3}, 0xffff0000, v{T3}
v_ashrrev_i32 v{T3+3}, 31, v{T3}
v_not_b32 v{T3+3}, v{T3+3}
v_or_b32 v{T3+3}, 0x80000000, v{T3+3}
v_xor_b32 v{T3}, v{T3}, v{T3+3}
v_and_b32 v{T3}, 0xffff0000, v{T3}
v_mul_f32 v{T3}, {f32bits(-LOG2E):#x}, v{T3}
v_exp_f32 v{T3}, v{T3}
s_mov_b32 s68, {POLL_MAX}
P3_GW:
s_waitcnt vmcnt(0)
v_cmp_ne_u32 vcc, s26, v{T3+7}
s_cbranch_vccz P3_GOK
s_sub_u32 s68, s68, 1
s_cbranch_scc1 P3_GOK
buffer_load_dwordx2 {vr(T3+6,2)}, v15, s[32:35], s60 offen sc1
s_branch P3_GW
P3_GOK:
v_mov_b32 v{T3+1}, v{T3+6}
v_sub_f32 v{T3+4}, 1.0, v{T3+6}
v_add_f32 v{T3}, 1.0, v{T3}
v_rcp_f32 v{T3}, v{T3}
""")
    for i in range(8):
        a(f"v_lshlrev_b32 v{B+2*i}, 16, v{X+i}\nv_and_b32 v{B+2*i+1}, 0xffff0000, v{X+i}")
    a(f"""
s_cmp_eq_u64 s[76:77], 0
s_cbranch_scc1 P3_NOSEL
s_mov_b32 s60, {WS_F3:#x}
s_mov_b32 s68, {POLL_MAX}
v_mul_u32_u24 v6, 12, v2
P3_POLL3:
buffer_load_dwordx4 {vr(Y,4)}, v3, s[32:35], s60 offen sc1
buffer_load_dwordx3 {vr(Y+4,3)}, v6, s[32:35], s60 offen offset:1024 sc1
s_sub_u32 s68, s68, 1
s_cbranch_scc1 P3_POLLED3
s_waitcnt vmcnt(0)
v_cmp_ne_u32 vcc, s26, v{Y}
""")
    for i in range(1, 7): a(f"v_cmp_ne_u32 s[64:65], s26, v{Y+i}\ns_or_b64 vcc, vcc, s[64:65]")
    a(f"""
s_cbranch_vccnz P3_POLL3
P3_POLLED3:
s_mov_b32 s60, {WS_Y:#x}
v_lshl_add_u32 v6, v5, 11, v13
""")
    for i in range(4): a(f"buffer_load_dwordx4 {vr(Y+4*i,4)}, v6, s[32:35], s60 offen offset:{16*i} sc1")
    a("s_waitcnt vmcnt(0)")
    for pat in ("row_ror:8", "row_ror:4", "row_ror:2", "row_ror:1"):
        for i in range(16): a(f"v_add_f32_dpp v{Y+i}, v{Y+i}, v{Y+i} {pat} row_mask:0xf bank_mask:0xf")
    for i in range(16): a(f"v_mov_b32 v{FR+i}, v{Y+i}")
    for i in range(16): a(f"v_permlane16_swap_b32 v{FR+i}, v{Y+i}")
    for i in range(16): a(f"v_add_f32 v{Y+i}, v{Y+i}, v{FR+i}")
    a("s_mov_b64 exec, s[76:77]")
    for i in range(16): a(f"v_fmac_f32 v{B+i}, v{Y+i}, v{T3}")
    a("s_mov_b64 exec, -1\nP3_NOSEL:")
    for i in range(16): a(f"v_mul_f32 v{B+i}, v{B+i}, v{T3+4}")
    a(f"""
s_add_u32 s66, s69, 4
P3_LOOP:
s_and_b32 s60, s69, 3
s_lshl_b32 s60, s60, 14
v_add_u32 v8, s60, v10
v_add_u32 v9, s60, v11
s_add_u32 s69, s69, 1
s_barrier
""")
    def reads3(hh):
        b = FR + 8*(hh % 4)
        a(f"ds_read_b128 {vr(b,4)}, v8 offset:{hh*1024}")
        a(f"ds_read_b64_tr_b16 {vr(b+4,2)}, v9 offset:{hh*2048}")
        a(f"ds_read_b64_tr_b16 {vr(b+6,2)}, v9 offset:{hh*2048+1024}")
    for hh in range(4): reads3(hh)
    for hh in range(8):
        b = FR + 8*(hh % 4)
        a(f"s_waitcnt lgkmcnt({3*min(3, 7-hh)})")
        a(f"v_mfma_f32_32x32x16_bf16 {vr(ACC3,16)}, {vr(b+4,4)}, {vr(b,4)}, {vr(ACC3,16)}")
        if hh + 4 < 8: reads3(hh+4)
    a(f"""
s_cmp_lg_u32 s69, s66
s_cbranch_scc1 P3_LOOP
s_nop 10
""")
    stamp(a, 10)
    for i in range(16): a(f"v_fmac_f32 v{B+i}, v{ACC3+i}, v{T3+1}")
    for i in range(8): a(f"v_cvt_pk_bf16_f32 v{X+i}, v{B+2*i}, v{B+2*i+1}")
    a(f"""
buffer_store_dwordx4 {vr(X,4)}, v14, s[44:47], 0 offen
buffer_store_dwordx4 {vr(X+4,4)}, v14, s[44:47], 0 offen offset:16
s_or_b32 s64, s2, s27
s_cbranch_scc1 L_END
s_mov_b32 s64, {WS_E:#x}
s_mov_b64 exec, 1
buffer_store_dword v{T+2}, v{T+3}, s[32:35], s64 offen sc1
L_END:
""")
    endpgm(a)
    a("L_EXIT:\ns_endpgm")
    A = T+4; R = T+8; H = T+44
    assert T+76 <= FS[0]
    def flagstore(ret, addr_lines):
        a(f"{addr_lines}\nv_mov_b32 v{T+2}, s26\nv_mov_b32 v{T+3}, 0\ns_waitcnt vmcnt(12)\ns_mov_b64 exec, 1")
        a(f"buffer_store_dword v{T+2}, v{T+3}, s[32:35], s65 offen sc1\ns_mov_b64 exec, -1\ns_branch {ret}")
    def cntwait(lab):
        a(f"""v_mov_b32 v{A}, {L_MISC+4:#x}
s_mov_b32 s79, {POLL_MAX}
{lab}:
ds_read_b32 v{A+1}, v{A}
s_sub_u32 s79, s79, 1
s_cbranch_scc1 {lab}OK
s_waitcnt lgkmcnt(0)
v_cmp_ne_u32 vcc, 4, v{A+1}
s_cbranch_vccz {lab}OK
s_sleep 2
s_branch {lab}
{lab}OK:""")
    a(f"""
FW_LD:
s_mov_b32 s79, {POLL_MAX}
s_mov_b32 s65, {WS_KG:#x}
buffer_load_dwordx4 {vr(KG,4)}, v3, s[32:35], s65 offen sc1
buffer_load_dwordx4 {vr(KG+4,4)}, v3, s[32:35], s65 offen offset:1024 sc1
s_branch FW_LD_RET
FW_KEYRE:
s_mov_b32 s65, {WS_KG:#x}
buffer_load_dwordx4 {vr(KG,4)}, v3, s[32:35], s65 offen sc1
buffer_load_dwordx4 {vr(KG+4,4)}, v3, s[32:35], s65 offen offset:1024 sc1
s_waitcnt vmcnt(0)
FW_KEYS:
s_waitcnt vmcnt(12)
v_cmp_ne_u32 vcc, s26, v{KG+1}
v_cmp_ne_u32 s[66:67], s26, v{KG+3}
s_or_b64 vcc, vcc, s[66:67]
v_cmp_ne_u32 s[66:67], s26, v{KG+5}
s_or_b64 vcc, vcc, s[66:67]
v_cmp_ne_u32 s[66:67], s26, v{KG+7}
s_or_b64 vcc, vcc, s[66:67]
s_sub_u32 s79, s79, 1
s_cbranch_scc1 FW_KEYOK
s_cbranch_vccnz FW_KEYRE
FW_KEYOK:
v_max3_u32 v{KG}, v{KG}, v{KG+2}, v{KG+4}
v_max_u32 v{KG}, v{KG}, v{KG+6}
""")
    umax_reduce64(a, KG, KG+1)
    srd(a, XS_SRD, 4, 0x200000)
    XF = T+68
    a(f"""
v_readfirstlane_b32 s65, v{KG}
v_mov_b32 v{KG+1}, {L_MISC:#x}
ds_write_b32 v{KG+1}, v{KG}
v_lshrrev_b32 v{A}, 4, v2
v_lshlrev_b32 v{A}, 4, v{A}
s_and_b32 s65, s65, 0x7ff
s_sub_u32 s65, 0x7ff, s65
s_lshl_b32 s65, s65, 10
s_lshl_b32 s66, s28, 7
s_add_u32 s65, s65, s66
buffer_load_dwordx4 {vr(XF,4)}, v{A}, s[{XS_SRD}:{XS_SRD+3}], s65 offen
buffer_load_dwordx4 {vr(XF+4,4)}, v{A}, s[{XS_SRD}:{XS_SRD+3}], s65 offen offset:64
s_branch FW_KEYS_RET
FW_S1:
""")
    cntwait("FW_C1")
    a(f"""
v_lshrrev_b32 v{A}, 4, v2
v_bfe_u32 v{A+1}, v2, 2, 2
v_lshl_add_u32 v{A}, v{A}, 3, v{A+1}
v_lshlrev_b32 v{A}, 7, v{A}
v_and_b32 v{A+2}, 3, v2
v_lshl_add_u32 v{A}, v{A+2}, 3, v{A}
v_lshrrev_b32 v{A+1}, 1, v{A+1}
v_lshl_add_u32 v{A}, v{A+1}, 6, v{A}
v_add_u32 v{A}, {L_FG:#x}, v{A}
v_xor_b32 v{A+1}, 64, v{A}
s_waitcnt vmcnt(12)
""")
    AC = T+36
    for m in range(2):
        for ks in range(2):
            for q in range(4):
                ad = A + (q >> 1)
                for jj in range(2):
                    a(f"ds_read_b64_tr_b16 {vr(R+4*q+2*jj,2)}, v{ad} offset:{m*0x2000 + ks*4096 + jj*512 + (q&1)*32}")
            for q in range(4):
                acc = vr(AC + 4*(m*4+q), 4)
                a(f"s_waitcnt lgkmcnt({6-2*q})")
                a(f"v_mfma_f32_16x16x32_bf16 {acc}, {vr(XF+4*ks,4)}, {vr(R+4*q,4)}, {acc if ks else 0}")
    a(f"""
v_lshlrev_b32 v{A}, 7, v2
s_lshl_b32 s65, s29, 13
s_lshl_b32 s66, s28, 4
s_add_u32 s65, s65, s66
s_add_u32 s65, s65, {WS_PRE:#x}
s_nop 3
v_mov_b32 v{AC+1}, v{AC+16}
v_mov_b32 v{AC+2}, s26
""")
    for lo, hi, q in ((0xffff0000, 0, 1), (0, 0xffff, 2), (0, 0xffff0000, 3)):
        a(f"s_mov_b32 exec_lo, {lo:#x}\ns_mov_b32 exec_hi, {hi:#x}\nv_mov_b32 v{AC}, v{AC+4*q}\nv_mov_b32 v{AC+1}, v{AC+16+4*q}")
    G = T+40
    HT = L_XS
    a(f"""
s_mov_b64 exec, -1
buffer_store_dwordx4 {vr(AC,4)}, v{A}, s[32:35], s65 offen sc1
s_branch FW_S1_RET
FW_S2A:
s_mov_b32 s79, {POLL_MAX}
s_lshl_b32 s65, s60, 10
s_add_u32 s65, s65, {WS_PRE:#x}
buffer_load_dwordx4 {vr(G,4)}, v3, s[32:35], s65 offen sc1
s_lshl_b32 s66, s27, 8
s_add_u32 s66, s66, {HT - 6*256:#x}
v_lshl_add_u32 v{A}, v2, 2, s66
v_mov_b32 v{A+1}, 0
ds_write_b32 v{A}, v{A+1}
s_branch FW_S2A_RET
FW_S2RE:
s_sleep 8
s_lshl_b32 s65, s60, 10
s_add_u32 s65, s65, {WS_PRE:#x}
buffer_load_dwordx4 {vr(G,4)}, v3, s[32:35], s65 offen sc1
s_waitcnt vmcnt(0)
FW_S2:
s_waitcnt vmcnt(12)
v_cmp_ne_u32 vcc, s26, v{G+2}
s_sub_u32 s79, s79, 1
s_cbranch_scc1 FW_S2OK
s_cbranch_vccnz FW_S2RE
FW_S2OK:
v_bfe_u32 v{A+2}, v2, 2, 3
v_lshlrev_b32 v{A+2}, 9, v{A+2}
v_and_b32 v{A+3}, 3, v2
v_lshl_add_u32 v{A+2}, v{A+3}, 3, v{A+2}
v_add_u32 v{A+2}, s68, v{A+2}
""")
    WF = R; YA = T+56
    pats = ("quad_perm:[1,0,3,2]", "quad_perm:[2,3,0,1]", "row_half_mirror")
    for k, pat in enumerate(pats):
        for i in range(2): a(f"v_add_f32_dpp v{G+i}, v{G+i}, v{G+i} {pat} row_mask:0xf bank_mask:0xf")
        for q in range(4*k, 4*k+4): a(f"ds_read_b64_tr_b16 {vr(WF+2*q,2)}, v{A+2} offset:{q*32}")
    a(f"""
v_mul_f32 v{G+2}, {f32bits(-LOG2E):#x}, v{G}
v_exp_f32 v{G+2}, v{G+2}
v_mul_f32 v{G}, v{G}, v{G+1}
s_lshl_b32 s66, s27, 8
s_add_u32 s66, s66, {HT - 6*256 + 96:#x}
v_add_f32 v{G+2}, 1.0, v{G+2}
v_rcp_f32 v{G+2}, v{G+2}
v_lshrrev_b32 v{A}, 3, v2
v_lshl_add_u32 v{A}, v{A}, 1, s66
v_mul_f32 v{G}, v{G}, v{G+2}
v_cvt_pk_bf16_f32 v{G}, v{G}, v{G}
ds_write_b16 v{A}, v{G}
v_lshrrev_b32 v{A}, 4, v2
v_lshl_add_u32 v{A}, v{A}, 3, s66
v_bfe_u32 v{A+1}, v2, 2, 2
v_lshlrev_b32 v{A+1}, 5, v{A+1}
v_sub_u32 v{A}, v{A}, v{A+1}
s_waitcnt lgkmcnt(4)
""")
    for q in range(12, 16): a(f"ds_read_b64_tr_b16 {vr(WF+2*q,2)}, v{A+2} offset:{q*32}")
    for j in range(4): a(f"ds_read_b64 {vr(H+2*j,2)}, v{A} offset:{j*32}")
    a(f"""
v_lshlrev_b32 v{A+1}, 2, v2
s_and_b32 s65, s60, 31
s_lshl_b32 s65, s65, 11
s_and_b32 s66, s27, 1
s_lshl_b32 s66, s66, 10
s_add_u32 s65, s65, s66
s_add_u32 s65, s65, {WS_Y:#x}
s_waitcnt lgkmcnt(0)""")
    for j in range(4):
        for Qn in range(4):
            acc = vr(YA + 4*Qn, 4)
            a(f"v_mfma_f32_16x16x16_bf16 {acc}, {vr(H+2*j,2)}, {vr(WF+2*(Qn*4+j),2)}, {acc if j else 0}")
    a("s_nop 7")
    for Qn in range(4):
        a(f"buffer_atomic_add_f32 v{YA+4*Qn}, v{A+1}, s[32:35], s65 offen offset:{Qn*256}")
    a("s_branch FW_S2_RET\nFW_F3:")
    flagstore("FW_F3_RET", f"s_lshl_b32 s65, s60, 1\ns_and_b32 s66, s27, 1\ns_add_u32 s65, s65, s66\ns_lshl_b32 s65, s65, 2\ns_add_u32 s65, s65, {WS_F3:#x}")
    a(f"""
P2_FALLBACK:
s_mov_b32 s64, s54
s_add_u32 s65, s54, 0x20000
v_mov_b32 v{T+2}, 0xff800000
FB_MAX:
buffer_load_dwordx4 {vr(FA,4)}, v3, s[32:35], s64 offen sc1
s_add_u32 s64, s64, 2048
s_waitcnt vmcnt(0)
v_mfma_f32_32x32x16_bf16 {vr(S0,16)}, {vr(FA,4)}, {vr(Q0,4)}, 0
s_nop 15
""")
    for i in range(8): a(f"v_max3_f32 v{T+2}, v{T+2}, v{S0+2*i}, v{S0+2*i+1}")
    a(f"""
s_cmp_lt_u32 s64, s65
s_cbranch_scc1 FB_MAX
v_mov_b32 v{T+3}, v{T+2}
s_nop 1
v_permlane32_swap_b32 v{T+3}, v{T+2}
s_nop 1
v_max_f32 v{T+2}, v{T+2}, v{T+3}
""")
    for i in range(16): a(f"v_mul_f32 v{M0+i}, -1.0, v{T+2}")
    for i in range(8): a(f"v_mov_b64 {vr(O0+2*i,2)}, 0")
    a(f"""
s_mov_b32 s64, s54
FB_ACC:
buffer_load_dwordx4 {vr(FA,4)}, v3, s[32:35], s64 offen sc1
s_mov_b64 exec, s[58:59]
buffer_load_dwordx4 {vr(FA+4,4)}, v3, s[32:35], s64 offen offset:1024 sc1
buffer_load_dwordx4 {vr(FA+8,4)}, v3, s[32:35], s64 offen offset:1280 sc1
s_mov_b64 exec, -1
s_add_u32 s64, s64, 2048
s_waitcnt vmcnt(0)
{qk(S0, FA, Q0, M0)}
s_nop 15
""")
    for i in range(16): a(f"v_exp_f32 v{S0+i}, v{S0+i}")
    a(f"""
s_nop 1
{smf(O0, FA+4, S0)}
{smf(O0, FA+8, S0+8)}
s_cmp_lt_u32 s64, s65
s_cbranch_scc1 FB_ACC
s_nop 15
v_rcp_f32 v{T+2}, v{O0+8}
s_nop 0
""")
    for i in range(8): a(f"v_mul_f32 v{O0+i}, v{O0+i}, v{T+2}")
    a("s_branch P2_STORE\nL_CODE_END:")
    return name

def main():
    body = Asm()
    name = gen(body)
    vg, sg = (256, 100)
    txt = body.text()
    txt = txt.replace("    s_mov_b32 s54, 1\n    s_waitcnt lgkmcnt(0)\n    s_cselect_b32 s36", "    s_mov_b32 s54, 1\n    s_cmp_lt_u32 s51, 2\n    s_waitcnt lgkmcnt(0)\n    s_cselect_b32 s36")
    out = f"""; generated by gen/gen6.py (own generator script)
; @launch grid=(256,1,1) block=(512,1,1) lds={LDS_BYTES}
.amdgcn_target "amdgcn-amd-amdhsa--gfx950"
.text
""" + txt + f""".section .rodata,"a"
.p2align 6
.amdhsa_kernel {name}
  .amdhsa_next_free_vgpr {vg}
  .amdhsa_next_free_sgpr {sg}
  .amdhsa_accum_offset {vg}
  .amdhsa_group_segment_fixed_size 0
  .amdhsa_kernarg_size 96
  .amdhsa_user_sgpr_count 2
  .amdhsa_user_sgpr_kernarg_segment_ptr 1
  .amdhsa_system_sgpr_workgroup_id_x 1
.end_amdhsa_kernel
"""
    if EXP & 1:
        i0 = out.index("P2_PRE:"); i1 = out.index("P2_X0:")
        out = out[:i0] + out[i0:i1].replace(" sc1", "") + out[i1:]
    if EXP & 2:
        out = "\n".join(("    buffer_load_dwordx4 v3, s[44:47], s62 offen lds" if ("s[36:39], s61 offen lds" in l or "s[40:43], s61 offen lds" in l) else l) for l in out.split("\n"))
    if EXP & 4:
        i0 = out.index("P2_BQ:"); i1 = out.index("P2_X0:")
        out = out[:i0] + "\n".join(l for l in out[i0:i1].split("\n") if "s_cbranch_scc1 FW_" not in l) + "\n" + out[i1:]
        out = out.replace("    s_cmp_eq_u64 s[76:77], 0\n    s_cbranch_scc1 P3_NOSEL", "    s_branch P3_NOSEL")
    path = sys.argv[1] if len(sys.argv) > 1 else f"cdna_kernels/{NAME}.s"
    open(path, "w").write(out)
main()
```

```python
import math, struct, sys, os

NAME = "gated_mix__mha_block__moe_arch_mod__prompt"
E = lambda k, d: int(os.environ.get(k, str(d)))
STAMP = bool(os.environ.get("STAMP"))
EXP = E("EXP", 0)

WS_KV = 0x200000
WS_OF = 0x600000
WS_G  = 0x800000
WS_Y  = 0x860000
WS_KG = 0x816000
WS_F3 = 0x815000
WS_E  = 0x818000
WS_F1 = 0x820000
WS_PRE = 0x880000
WS_F2 = 0x840000
FSH = E("FSH", 5)
WS_SIZE = 0x10000000
POLL_MAX = 1 << 18

L_WO = 0x00000; L_OF = 0x10000
L_FG = 0x10000; L_FD = 0x14000; L_XS = 0x16000
L_OX = 0x20000; L_LS = 0x24000; L_Q = 0x25000; L_MISC = 0x27000
LDS_BYTES = 0x28000

def f32bits(x): return struct.unpack("<I", struct.pack("<f", x))[0]
LOG2E = 1.4426950408889634
QSCALE = 0.25 * LOG2E

class Asm:
    def __init__(self): self.l = []
    def __call__(self, s):
        for line in s.strip("\n").split("\n"):
            line = line.strip()
            if not line: continue
            if line.endswith(":") : self.l.append(line)
            else: self.l.append("    " + line)
    def text(self): return "\n".join(self.l) + "\n"

def vr(a, n): return f"v[{a}:{a+n-1}]"
def srd(a, d, lo, nbytes):
    a(f"s_mov_b32 s{d}, s{lo}\ns_mov_b32 s{d+1}, s{lo+1}\ns_mov_b32 s{d+2}, {nbytes:#x}\ns_mov_b32 s{d+3}, 0x00020000")

NST = 10
LEAK = os.environ.get('LEAK', '').split(',') if os.environ.get('LEAK') else None
XS_SRD = 96
MAP = E("MAP", 0); ROT = E("ROT", 0)
ROTI = {0: "s_mov_b32 s55, 0", 1: "s_lshl_b32 s55, s31, 14", 2: "s_lshl_b32 s55, s48, 12", 3: "s_lshl_b32 s55, s31, 13"}[ROT]
SL1 = E("SL1", 4); SL2 = E("SL2", 4); PQ = E("PQ", 5); PS = E("PS", 11); NS = E("NS", 5); LA = E("LA", 4); FLAGAT = E("FLAGAT", 14)
def stamp(a, slot):
    if not STAMP: return
    a(f"s_memrealtime s[82:83]\ns_waitcnt lgkmcnt(0)\ns_mov_b32 s{86+slot if slot < 10 else 85}, s82")
def stampc(a, slot):
    if not STAMP: return
    a(f"s_memtime s[82:83]\ns_waitcnt lgkmcnt(0)\ns_sub_u32 s{86+slot}, s82, s{86+slot}")
def endpgm(a):
    if STAMP:
        a(f"""s_waitcnt vmcnt(0)
s_memrealtime s[82:83]
s_waitcnt lgkmcnt(0)
s_mov_b64 exec, 1
s_lshl_b32 s79, s2, 3
s_add_u32 s79, s79, s27
s_lshl_b32 s79, s79, 6
s_add_u32 s79, s79, 0x1000000
v_mov_b32 v249, s79
v_mov_b32 v232, s80
v_mov_b32 v233, s82""")
        for i in range(NST): a(f"v_mov_b32 v{234+i}, s{86+i}")
        a("v_mov_b32 v244, s85\nv_mov_b32 v245, 0\nv_mov_b32 v246, 0\nv_mov_b32 v247, 0")
        for i in range(4): a(f"global_store_dwordx4 v249, {vr(232+4*i,4)}, s[24:25] offset:{16*i}")
        if LEAK and ("gmin" in LEAK or "gmax" in LEAK):
            lab = f"L_LK{len(a.l)}"
            a(f"s_cmp_lg_u32 s2, 0\ns_cbranch_scc1 {lab}\ns_cmp_lg_u32 s27, 0\ns_cbranch_scc1 {lab}")
            a("s_mov_b64 exec, -1\ns_mov_b32 s4, 0x1100000\nbuffer_load_dwordx4 v[200:203], v3, s[32:35], s4 offen sc1\ns_waitcnt vmcnt(0)")
            a("v_max3_u32 v204, v200, v201, v202\nv_max_u32 v204, v204, v203\nv_min3_u32 v206, v200, v201, v202\nv_min_u32 v206, v206, v203\nv_not_b32 v206, v206")
            umax_reduce64(a, 204, 205); umax_reduce64(a, 206, 205)
            a("s_nop 1\nv_readfirstlane_b32 s8, v204\nv_readfirstlane_b32 s9, v206\ns_nop 3\ns_not_b32 s9, s9")
            reg = lambda k: {"start": "s80", "end": "s82", "gmin": "s9", "gmax": "s8"}[k]
            a(f"s_sub_u32 s4, {reg(LEAK[1])}, {reg(LEAK[0])}\ns_lshl_b32 s4, s4, 2\n{lab}_w:\ns_memrealtime s[6:7]\ns_waitcnt lgkmcnt(0)\ns_sub_u32 s5, s6, s82\ns_cmp_lt_u32 s5, s4\ns_cbranch_scc1 {lab}_w\n{lab}:")
        elif LEAK:
            lo, hi = LEAK
            reg = lambda k: {"start": "s80", "end": "s82", "10": "s85"}.get(k, f"s{86+int(k)}" if k.isdigit() else None)
            lab = f"L_LK{len(a.l)}"
            a(f"s_cmp_lg_u32 s2, 0\ns_cbranch_scc1 {lab}\ns_cmp_lg_u32 s27, 0\ns_cbranch_scc1 {lab}")
            a(f"s_sub_u32 s4, {reg(hi)}, {reg(lo)}\ns_lshl_b32 s4, s4, 2\n{lab}_w:\ns_memrealtime s[6:7]\ns_waitcnt lgkmcnt(0)\ns_sub_u32 s5, s6, s82\ns_cmp_lt_u32 s5, s4\ns_cbranch_scc1 {lab}_w\n{lab}:")
    a("s_endpgm")

def umax_reduce64(a, v, t):
    for pat in ("quad_perm:[1,0,3,2]", "quad_perm:[2,3,0,1]", "row_half_mirror", "row_mirror"):
        a(f"s_nop 1\nv_max_u32_dpp v{v}, v{v}, v{v} {pat} row_mask:0xf bank_mask:0xf")
    for sw in ("v_permlane16_swap_b32", "v_permlane32_swap_b32"):
        a(f"v_mov_b32 v{t}, v{v}\ns_nop 1\n{sw} v{t}, v{v}\ns_nop 1\nv_max_u32 v{v}, v{v}, v{t}")

GROUPS = {0: [0,1,3,5,7,9,11,13,14,15], 1: list(range(16)), 2: [0,1,2,3,5,7,9,11,13,15], 3: [0,1,3,5,7,11,13,15]}[E("GRP", 0)]
DIST = E("DIST", 6)
for _k, _g in enumerate(GROUPS[:-1]):
    _a = GROUPS[_k-1] + 1 if _k else 0
    assert min(15, GROUPS[_k+1] + LA - 1) - 8 <= _a - 2, (_g, LA)
assert GROUPS[0] + LA - 1 < 8
SEC_A, SEC_B, SEC_C = 1, 2, 0

def gen(a):
    name = NAME + "_kernel"
    a.l.append(f".globl {name}\n.p2align 8\n.type {name},@function\n{name}:")
    if STAMP:
        a("s_memrealtime s[80:81]")
        for i in range(NST): a(f"s_mov_b32 s{86+i}, 0")
    a("""
s_cmp_ge_u32 s2, 256
s_cbranch_scc1 L_EXIT
s_load_dwordx4 s[4:7], s[0:1], 0
s_load_dwordx2 s[24:25], s[0:1], 88
s_load_dwordx2 s[8:9], s[0:1], 16
s_load_dwordx8 s[12:19], s[0:1], 32
s_load_dwordx4 s[20:23], s[0:1], 64
v_lshrrev_b32 v1, 6, v0
v_and_b32 v2, 63, v0
s_and_b32 s28, s2, 7
v_readfirstlane_b32 s27, v1
s_lshr_b32 s29, s2, 3
s_lshr_b32 s48, s28, 1
s_lshl_b32 s48, s48, 3
s_lshr_b32 s31, s29, 2
s_add_u32 s48, s48, s31
s_and_b32 s30, s29, 3
s_and_b32 s49, s28, 1
s_lshl_b32 s49, s49, 2
s_add_u32 s49, s49, s30
s_lshl_b32 s50, s30, 1
s_add_u32 s50, s50, s31
s_and_b32 s50, s50, 7
v_lshlrev_b32 v3, 4, v2
""")
    if MAP == 1:
        a("s_mov_b32 s48, s29\ns_mov_b32 s49, s28\ns_and_b32 s50, s29, 7")
    if MAP == 2:
        a("""s_lshr_b32 s48, s28, 2
s_lshl_b32 s48, s48, 4
s_lshr_b32 s50, s29, 1
s_add_u32 s48, s48, s50
s_and_b32 s49, s28, 3
s_lshl_b32 s49, s49, 1
s_and_b32 s51, s29, 1
s_add_u32 s49, s49, s51
s_lshl_b32 s51, s51, 2
s_add_u32 s50, s50, s51
s_and_b32 s50, s50, 7""")
    a("""
s_cmp_lt_u32 s27, 4
s_cbranch_scc1 P1_COMPUTE
""")
    a(f"""
s_sub_u32 s51, s27, 4
s_and_b32 s52, s51, 1
s_lshl_b32 s57, s48, 16
s_lshl_b32 s58, s52, 15
s_add_u32 s57, s57, s58
s_mul_i32 s58, s52, {32*3072}
s_lshl_b32 s59, s49, 7
s_add_u32 s58, s58, s59
v_lshrrev_b32 v4, 3, v2
v_and_b32 v5, 7, v2
v_lshrrev_b32 v6, 1, v4
v_xor_b32 v6, v5, v6
v_lshlrev_b32 v6, 4, v6
v_lshl_add_u32 v6, v4, 10, v6
v_add_u32 v8, s57, v6
v_xor_b32 v9, 64, v8
v_lshlrev_b32 v7, 1, v4
v_and_b32 v7, 4, v7
v_xor_b32 v5, v5, v7
v_lshlrev_b32 v5, 4, v5
v_mul_u32_u24 v4, 3072, v4
v_add3_u32 v10, v4, v5, s58
s_cmp_lt_u32 s51, 2
s_cselect_b64 vcc, -1, 0
s_mov_b32 s56, 0x30000
s_cmovk_i32 s56, 128
s_mov_b32 s38, 0x180000
s_cmov_b32 s38, 0x200000
s_movk_i32 s60, {8*3072-1024}
s_cmovk_i32 s60, 7168
s_movk_i32 s59, {SEC_A*1024}
s_cmovk_i32 s59, 0
s_mov_b32 s39, 0x00020000
v_cndmask_b32 v8, v10, v8, vcc
v_cndmask_b32 v9, v10, v9, vcc
s_lshl_b32 s61, s51, 12
s_mov_b32 s62, 0
s_mov_b32 s53, s50
s_mov_b32 s55, {sum(1 << (g+LA) for g in GROUPS):#x}
s_mov_b32 s65, {WS_E:#x}
s_mov_b32 s54, 1
s_waitcnt lgkmcnt(0)
s_cselect_b32 s36, s4, s6
s_cselect_b32 s37, s5, s7
s_load_dword s26, s[24:25], s65
P1_LD_LOOP:
s_bitcmp1_b32 s55, s62
s_cbranch_scc0 P1_LD_ISSUE
s_waitcnt vmcnt({4*(LA-1)}) lgkmcnt(0)
s_barrier
P1_LD_ISSUE:
s_and_b32 s64, s62, 7
s_lshl_b32 s64, s64, 14
s_add_u32 m0, s64, s61
s_and_b32 s63, s53, 7
s_mul_i32 s63, s63, s56
s_add_u32 s63, s63, s59
""")
    for i in range(4):
        a(f"buffer_load_dwordx4 v{8+(i&1)}, s[36:39], s63 offen offset:{i*1024} lds")
        if i != 3: a("s_add_u32 s63, s63, s60")
    a(f"""
s_add_u32 s53, s53, s54
s_add_u32 s62, s62, 1
s_cmp_eq_u32 s62, 8
s_cbranch_scc0 P1_LD_N8
s_mov_b32 s36, s6
s_mov_b32 s37, s7
s_mov_b32 s38, 0x180000
s_mov_b32 s56, 0x30000
s_movk_i32 s60, {8*3072-1024}
s_movk_i32 s59, {SEC_B*1024}
v_mov_b32 v8, v10
v_mov_b32 v9, v10
s_lshr_b32 s53, s51, 1
s_add_u32 s53, s53, s50
s_mov_b32 s54, 2
P1_LD_N8:
s_cmp_eq_u32 s62, 12
s_cmovk_i32 s59, {SEC_C*1024}
s_cmp_lt_u32 s62, 16
s_cbranch_scc1 P1_LD_LOOP
""")
    srd(a, 32, 24, WS_SIZE)
    a("""
s_mul_i32 s26, s26, 0x9e3779b1
s_add_u32 s26, s26, 0x7f4a7c15
s_cmp_eq_u32 s51, 1
s_cbranch_scc1 P1_RG
""")
    for g in GROUPS:
        if g + LA >= 16: a(f"s_waitcnt vmcnt({4*(15-g)})\ns_barrier")
    a("s_branch P2_SETUP\nP1_RG:")
    X = 128; WR = 160; WGT = 164; P = 168
    srd(a, 36, 4, 0x200000); srd(a, 40, 12, 1024); srd(a, 44, 20, 1024)
    a(f"""
s_lshl_b32 s66, s48, 3
s_add_u32 s66, s66, s49
s_lshl_b32 s53, s66, 13
s_add_u32 s54, s53, 4096
v_mov_b32 v{P}, 0
s_lshl_b32 s55, s2, 8
s_add_u32 s55, s55, {WS_Y:#x}
v_lshlrev_b32 v7, 2, v2
buffer_store_dword v{P}, v7, s[32:35], s55 offen sc1
""")
    a(f"buffer_load_dwordx4 {vr(WR,4)}, v3, s[40:43], 0 offen")
    a(f"buffer_load_dwordx4 {vr(WGT,4)}, v3, s[44:47], 0 offen")
    for i in range(8):
        a(f"buffer_load_dwordx4 {vr(X+4*i,4)}, v3, s[36:39], s{53 if i < 4 else 54} offen offset:{(i%4)*1024}")
    for g in GROUPS:
        if g + LA >= 16: a(f"s_waitcnt vmcnt({4*(15-g)+11})\ns_barrier")
    for i in range(8): a(f"v_mov_b64 {vr(P+2*i,2)}, 0")
    a(f"""
v_and_b32 v6, 1, v2
v_cmp_eq_u32 vcc, 0, v6
v_and_b32 v6, 2, v2
v_cmp_eq_u32 s[56:57], 0, v6
v_and_b32 v24, 3, v2
v_bfe_u32 v7, v2, 4, 1
v_lshl_add_u32 v24, v7, 2, v24
s_lshl_b32 s53, s66, 3
v_add_u32 v24, s53, v24
s_waitcnt vmcnt(0)
""")
    for k in range(4):
        for i in range(8):
            a(f"v_dot2c_f32_bf16 v{P+i}, v{X+4*i+k}, v{WR+k}")
            a(f"v_dot2c_f32_bf16 v{P+8+i}, v{X+4*i+k}, v{WGT+k}")
    a("s_nop 2")
    for i in range(8): a(f"v_permlane32_swap_b32 v{P+i}, v{P+8+i}")
    a("s_nop 1")
    for i in range(8): a(f"v_add_f32 v{P+i}, v{P+i}, v{P+8+i}")
    a("s_nop 1")
    for i in range(4): a(f"v_permlane16_swap_b32 v{P+i}, v{P+4+i}")
    a("s_nop 1")
    for i in range(4): a(f"v_add_f32 v{P+i}, v{P+i}, v{P+4+i}")
    for pat in ("row_ror:8", "row_ror:4", "row_ror:2", "row_ror:1"):
        for i in range(4): a(f"v_add_f32_dpp v{P+i}, v{P+i}, v{P+i} {pat} row_mask:0xf bank_mask:0xf")
    a(f"""
v_cndmask_b32 v{P}, v{P+1}, v{P}, vcc
v_cndmask_b32 v{P+2}, v{P+3}, v{P+2}, vcc
v_cndmask_b32 v{P}, v{P+2}, v{P}, s[56:57]
v_cvt_pk_bf16_f32 v{P}, v{P}, v{P}
v_and_b32 v{P}, 0xffff0000, v{P}
v_mul_f32 v28, {f32bits(-LOG2E):#x}, v{P}
v_exp_f32 v28, v28
v_ashrrev_i32 v26, 31, v{P}
v_or_b32 v26, 0x80000000, v26
v_add_f32 v28, 1.0, v28
v_rcp_f32 v28, v28
v_xor_b32 v26, v{P}, v26
v_and_b32 v26, 0xffff0000, v26
v_sub_u32 v7, 0x7ff, v24
v_or_b32 v26, v26, v7
v_cvt_pk_bf16_f32 v28, v28, v28
v_and_b32 v28, 0xffff0000, v28
v_mov_b32 v29, s26
v_lshlrev_b32 v24, 3, v24
s_mov_b32 s53, {WS_G:#x}
s_mov_b32 exec_lo, 0
s_mov_b32 exec_hi, 0x000f000f
buffer_store_dwordx2 v[28:29], v24, s[32:35], s53 offen sc1
s_mov_b32 exec_hi, -1
v_mov_b32 v26, 0
s_mov_b32 exec_lo, -1
""")
    umax_reduce64(a, 26, 27)
    a(f"""
v_mov_b32 v27, s26
v_mov_b32 v7, 0
s_lshl_b32 s53, s66, 3
s_add_u32 s53, s53, {WS_KG:#x}
s_mov_b64 exec, 1
buffer_store_dwordx2 v[26:27], v7, s[32:35], s53 offen sc1
s_mov_b64 exec, -1
s_branch P2_SETUP
""")
    XR = 128; WB = 64; ACC = [32, 48]
    a(f"""
P1_COMPUTE:
""")
    if E("CPF", 0):
        a("""
s_getpc_b64 s[60:61]
L_PC:
s_lshl_b32 s62, s29, 2
s_add_u32 s62, s62, s27
s_lshl_b32 s62, s62, 8
s_min_u32 s62, s62, L_CODE_END - L_PC - 256
""")
    a(f"""
s_and_b32 s51, s27, 1
s_lshr_b32 s52, s27, 1
s_mov_b32 s65, {WS_E:#x}
v_mov_b32 v21, 0
v_lshrrev_b32 v4, 5, v2
v_and_b32 v5, 31, v2
v_bfe_u32 v6, v2, 1, 3
v_xor_b32 v6, v6, v4
v_lshlrev_b32 v6, 4, v6
s_lshl_b32 s53, s51, 12
v_lshl_add_u32 v6, v5, 7, v6
v_add_u32 v10, s53, v6
v_xor_b32 v11, 32, v10
v_xor_b32 v12, 64, v10
v_xor_b32 v13, 0x60, v10
v_bfe_u32 v6, v2, 2, 2
v_lshl_add_u32 v7, v4, 3, v6
v_lshlrev_b32 v7, 7, v7
v_lshrrev_b32 v6, 1, v6
v_xor_b32 v6, s52, v6
v_lshl_add_u32 v7, v6, 6, v7
v_bfe_u32 v6, v2, 4, 1
v_lshl_add_u32 v7, v6, 5, v7
v_and_b32 v6, 3, v2
v_lshl_add_u32 v14, v6, 3, v7
v_add_u32 v15, 0x10000, v14
v_add_u32 v16, 0x10000, v10
v_add_u32 v17, 0x10000, v11
v_add_u32 v18, 0x10000, v12
v_add_u32 v19, 0x10000, v13
s_waitcnt lgkmcnt(0)
""")
    if E("CPF", 0): a("s_load_dword s63, s[60:61], s62\ns_load_dword s63, s[60:61], s62 offset:128")
    srd(a, 32, 24, WS_SIZE)
    a("buffer_load_dword v21, v21, s[32:35], s65 offen")
    if E("WPF", 0):
        a("s_cmp_lt_u32 s27, 2\ns_cbranch_scc1 P1_NOPF")
        srd(a, 36, 6, 0x180000)
        a(f"""s_mul_i32 s53, s50, 0x30000
s_lshl_b32 s54, s49, 7
s_add_u32 s53, s53, s54
s_cmp_eq_u32 s27, 2
s_cselect_b32 s54, {SEC_B*1024}, {SEC_C*1024}
s_add_u32 s53, s53, s54
v_mul_u32_u24 v31, 3072, v2
buffer_load_dword v31, v31, s[36:39], s53 offen
P1_NOPF:""")
    a(f"v_mov_b32 v6, {L_MISC+4:#x}\nv_mov_b32 v7, 0\nds_write_b32 v6, v7")
    a(f"""
s_lshl_b32 s53, s48, 1
s_add_u32 s53, s53, s51
s_lshl_b32 s54, s49, 2
s_lshl_b32 s55, s52, 1
s_add_u32 s54, s54, s55
s_lshl_b32 s59, s53, 11
s_lshl_b32 s57, s54, 17
s_add_u32 s59, s59, s57
s_add_u32 s59, s59, {WS_KV:#x}
s_add_u32 s60, s59, 0x20000
s_lshl_b32 s54, s49, 5
s_add_u32 s54, s54, s48
s_lshl_b32 s54, s54, {FSH}
s_add_u32 s54, s54, {WS_F1:#x}
s_mov_b32 s64, {f32bits(QSCALE):#x}
s_mov_b32 s65, {f32bits(QSCALE):#x}
v_and_b32 v6, 0x33, v2
v_and_b32 v7, 4, v2
v_lshl_or_b32 v6, v7, 1, v6
v_and_b32 v7, 8, v2
v_lshrrev_b32 v7, 1, v7
v_or_b32 v6, v6, v7
v_lshlrev_b32 v22, 4, v6
v_and_b32 v6, 0x2f, v2
v_lshlrev_b32 v6, 4, v6
v_bfe_u32 v7, v2, 4, 1
v_lshl_add_u32 v23, v7, 17, v6
s_lshl_b32 s56, s52, 12
s_lshl_b32 s57, s51, 10
s_add_u32 s56, s56, s57
s_add_u32 s56, s56, {L_Q:#x}
v_add_u32 v1, s56, v3
""")
    stamp(a, 0)
    NWB = 12
    steps = []
    for n in range(16):
        if n < 8:
            for s in range(4): steps.append((n, 0, 4*n+s, 0x2000 + s*2048))
        else:
            m = n & 3
            for s in range(8): steps.append((n, 1 if n < 12 else 2, 8*m+s, s*2048))
    def rd(idx):
        n, p, ks, wo = steps[idx]
        slot = n & 7; hi = slot >= 4; so = (slot & 3) * 0x4000
        wb = WB + 4*(idx % NWB)
        r = []
        if p == 0: r.append(f"ds_read_b128 {vr(XR+4*ks,4)}, v{(16 if hi else 10)+(ks&3)} offset:{so}")
        for jj in range(2): r.append(f"ds_read_b64_tr_b16 {vr(wb+2*jj,2)}, v{15 if hi else 14} offset:{so+wo+jj*512}")
        return r
    def mf(idx):
        n, p, ks, wo = steps[idx]
        wb = vr(WB + 4*(idx % NWB), 4); x = vr(XR+4*ks, 4); acc = vr(ACC[p & 1], 16)
        c = acc if ks else "0"
        return f"v_mfma_f32_32x32x16_bf16 {acc}, {x}, {wb}, {c}" if p == 1 else f"v_mfma_f32_32x32x16_bf16 {acc}, {wb}, {x}, {c}"
    PK = 112
    def epi(p):
        A_ = ACC[p & 1]
        if p == 2:
            for i in range(8): a(f"v_pk_mul_f32 {vr(A_+2*i,2)}, {vr(A_+2*i,2)}, s[64:65]")
        o = PK + (8 if p else 0)
        for i in range(8): a(f"v_cvt_pk_bf16_f32 v{o+i}, v{A_+2*i}, v{A_+1+2*i}")
        if p == 0:
            a(f"buffer_store_dwordx4 {vr(o,4)}, v22, s[32:35], s59 offen sc1\nbuffer_store_dwordx4 {vr(o+4,4)}, v22, s[32:35], s60 offen sc1")
        elif p == 1:
            a(f"buffer_store_dwordx4 {vr(o,4)}, v23, s[32:35], s59 offen offset:1024 sc1\nbuffer_store_dwordx4 {vr(o+4,4)}, v23, s[32:35], s59 offen offset:1280 sc1")
        else:
            a(f"ds_write_b128 v1, {vr(o,4)}\nds_write_b128 v1, {vr(o+4,4)} offset:2048")
    first_of_group = {}
    prev = -1
    for g in GROUPS:
        first_of_group[min(i for i, st in enumerate(steps) if st[0] == prev+1)] = g
        prev = g
    lq = []
    nb = 0
    FB = E("FB", 13)
    def issue(i):
        nonlocal nb
        if i >= len(steps): return
        if i in first_of_group:
            g = first_of_group[i]
            if g == FB + (1 if FB + 1 in GROUPS else 2) or False: pass
            if g == FLAGAT:
                if E("PST", 0) == 2: stamp(a, 1); lq.clear()
                a("s_waitcnt vmcnt(0)")
            a("s_barrier")
            if nb == 0: stamp(a, 1)
            PS_ = {1: {4: 5, 8: 6, 12: 8}, 2: {10: 5, 12: 6, 15: 8}}.get(E("PST", 0), {})
            if steps[i][0] in PS_: stamp(a, PS_[steps[i][0]])
            if STAMP and (nb == 0 or steps[i][0] in PS_): lq.clear()
            if g == FLAGAT:
                a("""
s_cmp_lg_u32 s27, 0
s_cbranch_scc1 P1_NOKG
s_mov_b64 exec, 1
buffer_store_dword v27, v7, s[32:35], s54 offen sc1
s_mov_b64 exec, -1
P1_NOKG:
""")
                stamp(a, 3)
                if STAMP: lq.clear()
            nb += 1
        for x in rd(i):
            a(x); lq.append(i)
    for i in range(min(DIST, 4)): issue(i)
    nxt = min(DIST, 4)
    for i in range(len(steps)):
        while nxt <= i + DIST and nxt < len(steps) and len([x for x in lq if x >= i]) + len(rd(nxt)) <= 15:
            issue(nxt); nxt += 1
        rem = len([x for x in lq if x > i])
        if any(x <= i for x in lq):
            a(f"s_waitcnt lgkmcnt({rem})")
            lq[:] = [x for x in lq if x > i]
        a(mf(i))
        if i == 16:
            a("""
s_waitcnt vmcnt(0)
v_readfirstlane_b32 s26, v21
v_mov_b32 v7, 0
s_nop 2
s_mul_i32 s26, s26, 0x9e3779b1
s_add_u32 s26, s26, 0x7f4a7c15
v_mov_b32 v27, s26
""")
        if i in (32+3, 64+3):
            epi(0 if i < 64 else 1)
    if E("PST", 0) == 2: stamp(a, 0)
    a("s_nop 11")
    epi(2)
    stamp(a, 2)
    Q0, Q1, S0, S1, O0, O1, M0, M1, T = 4, 8, 16, 32, 48, 64, 80, 96, 112
    FS = [192 - 12*NS + 12*i + 64 for i in range(NS)]
    FW = 3
    a(f"""
P2_SETUP:
s_and_b32 s51, s27, 3
s_lshr_b32 s52, s27, 2
s_lshl_b32 s53, s49, 2
s_add_u32 s53, s53, s51
s_lshl_b32 s54, s53, 17
s_add_u32 s54, s54, {WS_KV:#x}
s_lshl_b32 s57, s52, 16
{ROTI}
s_add_u32 s57, s57, s55
s_and_b32 s57, s57, 0x1ffff
v_mov_b32 v12, 0xdddddddd
v_and_b32 v14, 27, v2
v_cmp_eq_u32 vcc, 16, v14
v_mov_b32 v15, 0x3f803f80
s_mov_b32 s58, 0xffff
s_mov_b32 s59, 0xffff
v_cndmask_b32 v14, 0, v15, vcc
v_mov_b32 v15, v14
s_lshl_b32 s56, s51, 11
s_add_u32 s56, s56, {L_Q:#x}
v_add_u32 v13, s56, v3
""")
    for F in FS:
        for i in range(4): a(f"v_mov_b64 {vr(F+4+2*i,2)}, v[14:15]")
    vq = []
    def ld(t):
        F = FS[t % NS]; r = []
        if t % 2 == 0:
            r += ["s_add_u32 s64, s54, s57", "s_add_u32 s57, s57, 4096", "s_and_b32 s57, s57, 0x1ffff"]
        o = (t % 2) * 2048
        r += [f"buffer_load_dwordx4 {vr(F,4)}, v3, s[32:35], s64 offen offset:{o} sc1", "s_mov_b64 exec, s[58:59]",
              f"buffer_load_dwordx4 {vr(F+4,4)}, v3, s[32:35], s64 offen offset:{o+1024} sc1",
              f"buffer_load_dwordx4 {vr(F+8,4)}, v3, s[32:35], s64 offen offset:{o+1280} sc1", "s_mov_b64 exec, -1"]
        vq.extend([("t", t)]*3)
        return r
    def wait_tile(t):
        last = max(i for i, x in enumerate(vq) if x == ("t", t))
        return f"s_waitcnt vmcnt({len(vq)-1-last})"
    a(f"""
s_cmp_lg_u32 s27, 4
s_cbranch_scc1 P2_BQ
s_lshl_b32 s64, s49, {5+FSH}
s_add_u32 s64, s64, {WS_F1:#x}
v_and_b32 v4, 31, v2
v_lshlrev_b32 v4, {FSH}, v4
s_mov_b32 s65, {POLL_MAX}
P2_POLL:
buffer_load_dword v5, v4, s[32:35], s64 offen sc1
s_sub_u32 s65, s65, 1
s_cbranch_scc1 P2_BQ
s_waitcnt vmcnt(0)
v_cmp_ne_u32 vcc, s26, v5
s_cbranch_vccz P2_BQ
s_sleep {SL1}
s_branch P2_POLL
P2_BQ:
s_waitcnt lgkmcnt(0)
s_barrier
""")
    stamp(a, 4)
    for t in range(NS-1):
        for x in ld(t): a(x)
    a(f"""
ds_read_b128 {vr(Q0,4)}, v13
ds_read_b128 {vr(Q1,4)}, v13 offset:1024
""")
    a(f"""
s_min_u32 s60, s29, 27
s_mul_i32 s61, s28, 28
s_add_u32 s60, s60, s61
s_lshl_b32 s63, s27, 10
v_lshrrev_b32 v{T+1}, 3, v2
v_and_b32 v{T+2}, 7, v2
v_lshlrev_b32 v{T+3}, 1, v{T+1}
v_and_b32 v{T+3}, 4, v{T+3}
v_xor_b32 v{T+2}, v{T+2}, v{T+3}
v_lshlrev_b32 v{T+2}, 4, v{T+2}
v_mul_u32_u24 v{T}, 3584, v{T+1}
v_add_u32 v{T}, v{T}, v{T+2}
v_lshl_add_u32 v{T+1}, v{T+1}, 10, v{T+2}
s_lshl_b32 s70, s49, 7
s_lshl_b32 s71, s27, 13
s_add_u32 s70, s70, s71
s_lshr_b32 s77, s27, 1
s_cmp_gt_u32 s29, 27
s_cselect_b32 s76, 0, s27
s_cselect_b32 s77, 0, s77
s_cselect_b32 s78, 0, 1
s_cmp_gt_u32 s27, 3
s_cselect_b32 s78, 0, s78
s_lshl_b32 s61, s28, 3
s_add_u32 s61, s61, s27
s_mul_i32 s61, s61, {8*3584}
s_lshl_b32 s62, s29, 7
s_add_u32 s61, s61, s62
s_and_b32 s67, s27, 1
s_lshl_b32 s68, s67, 9
s_lshl_b32 s62, s60, 13
s_add_u32 s62, s62, s68
s_lshl_b32 s68, s67, 12
s_add_u32 s68, s68, {L_FD:#x}
v_lshrrev_b32 v{T+6}, 5, v2
v_lshl_add_u32 v{T+6}, v{T+6}, 9, v3
""")
    for i in range(16): a(f"v_mov_b64 {vr(O0+2*i,2)}, 0")
    srd(a, 36, 14, 512*3584); srd(a, 40, 16, 512*3584); srd(a, 44, 18, 512*3584); srd(a, 72, 8, 0x80000)
    a(f"""
{wait_tile(0)} lgkmcnt(0)
v_mfma_f32_32x32x16_bf16 {vr(S0,16)}, {vr(FS[0],4)}, {vr(Q0,4)}, 0
v_mfma_f32_32x32x16_bf16 {vr(S1,16)}, {vr(FS[0],4)}, {vr(Q1,4)}, 0
s_nop 10
""")
    if not E("PST", 0): stamp(a, 5)
    for S, M, t in ((S0, M0, T+2), (S1, M1, T+4)):
        a(f"v_max3_f32 v{t}, v{S}, v{S+1}, v{S+2}")
        for i in range(6): a(f"v_max3_f32 v{t}, v{t}, v{S+3+2*i}, v{S+4+2*i}")
        a(f"v_max_f32 v{t}, v{t}, v{S+15}\nv_mov_b32 v{t+1}, v{t}\ns_nop 1\nv_permlane32_swap_b32 v{t+1}, v{t}\ns_nop 1")
        a(f"v_max_f32 v{t}, v{t}, v{t+1}\nv_mul_f32 v{M}, -1.0, v{t}\nv_mul_f32 v{M+1}, -1.0, v{t}")
        for i in range(1, 8): a(f"v_mov_b64 {vr(M+2*i,2)}, {vr(M,2)}")
        if S == S0:
            a(f"s_nop 1\nv_mfma_f32_32x32x16_bf16 {vr(S0,16)}, {vr(FS[0],4)}, {vr(Q0,4)}, {vr(M0,16)}")
    def smf(o, v, p): return f"v_smfmac_f32_32x32x32_bf16 {vr(o,16)}, {vr(v,4)}, {vr(p,8)}, v12"
    def qk(d, k, q, mn): return f"v_mfma_f32_32x32x16_bf16 {vr(d,16)}, {vr(k,4)}, {vr(q,4)}, {vr(mn,16)}"
    if not E("PST", 0): stamp(a, 6)
    if LEAK and ("gmin" in LEAK or "gmax" in LEAK):
        src = os.environ.get("GSRC", "s80")
        a(f"s_cmp_lg_u32 s27, 0\ns_cbranch_scc1 L_GS\ns_lshl_b32 s64, s2, 2\ns_add_u32 s65, s64, 0x1100000\nv_mov_b32 v{T+2}, {src}\nv_mov_b32 v{T+3}, 0\nbuffer_store_dword v{T+2}, v{T+3}, s[32:35], s65 offen sc1\nL_GS:")
    stampc(a, 7)
    prio_at = {0: 3, E("P2", 36): 2, E("P1", 56): 1, E("P0", 62): 0}
    KG = T+8
    extras = {}
    def addx(u, lines, nv=0): extras.setdefault(u, []).append((lines, nv))
    def hook(u, reg, val, lab): addx(u, [f"s_cmp_eq_u32 {reg}, {val}", f"s_cbranch_scc1 {lab}", f"{lab}_RET:"])
    U1 = E("U1", 1); SP = E("SP", 3); UK = U1 + 10; UC = U1 + 3*SP + 2*NS; US1 = E("US1", 23); US2 = E("US2", 24)
    assert UC < US1 and UK + 10 <= US1
    hook(U1, "s27", 1, "FW_LD")
    hook(UK, "s27", 1, "FW_KEYS")
    hook(US1, "s76", 1, "FW_S1")
    hook(US2, "s77", 3, "FW_S2A")
    hook(US2+8, "s77", 3, "FW_S2")
    hook(US2+20, "s77", 3, "FW_F3")
    for k in range(4):
        srdn, ldsb = [(36, L_FG), (40, L_FG+0x2000)][k & 1]
        half = k >> 1
        addx(U1 + SP*k, ["s_cmp_eq_u32 s78, 0", f"s_cbranch_scc1 FWS{k}", f"s_add_u32 m0, s63, {ldsb + half*0x1000:#x}", f"s_add_u32 s65, s61, {half*32*3584}",
                         f"buffer_load_dwordx4 v{T}, s[{srdn}:{srdn+3}], s65 offen lds", f"FWS{k}:"])
        addx(2 + 2*k, ["s_cmp_lg_u32 s77, 3", f"s_cbranch_scc1 FWD{k}", f"s_add_u32 m0, s68, {k*0x400:#x}", f"s_add_u32 s65, s62, {k*2048}",
                         f"buffer_load_dwordx4 v{T+6}, s[44:47], s65 offen lds", f"FWD{k}:"])
    addx(UC, ["s_cmp_eq_u32 s78, 0", "s_cbranch_scc1 FWSC", f"v_mov_b32 v{T+2}, {L_MISC+4:#x}", f"v_mov_b32 v{T+3}, 1", "s_mov_b64 exec, 1", f"ds_add_u32 v{T+2}, v{T+3}", "s_mov_b64 exec, -1", "FWSC:"])
    for g in range(8):
        addx(E('UWO', 27) + 4*g, [f"s_add_u32 m0, s63, {L_WO + g*0x2000:#x}", f"s_add_u32 s65, s70, {g*0x10000:#x}", f"buffer_load_dwordx4 v{T+1}, s[72:75], s65 offen lds"], 1)
    for kt in range(32):
        F = FS[kt % NS]; Fp = FS[(kt-1) % NS]; Fn = FS[(kt+1) % NS]
        for q in range(2):
            u = 2*kt+q
            cur, nxt = (S0, S1) if q == 0 else (S1, S0)
            Oc, On = (O0, O1) if q == 0 else (O1, O0)
            if u in prio_at: a(f"s_setprio {prio_at[u]}")
            if E("QST", 0) and u in (8, 16, 24, 32): stamp(a, {8: 0, 16: 1, 24: 2, 32: 3}[u])
            for i in range(16):
                if i == 2:
                    if u: a(smf(On, (Fp if q == 0 else F) + 8, nxt + 8))
                    if q == 0 and kt + NS - 1 < 32:
                        for x in ld(kt + NS - 1): a(x)
                if i == PQ and u != 63:
                    if q == 1:
                        a(wait_tile(kt+1))
                    a(qk(nxt, F if q == 0 else Fn, Q1 if q == 0 else Q0, M1 if q == 0 else M0))
                if i == 8 and u in extras:
                    for lines, nv in extras[u]:
                        for x in lines: a(x)
                        vq.extend([("x", u)]*nv)
                if i == PS: a(smf(Oc, F + 4, cur))
                a(f"v_exp_f32 v{cur+i}, v{cur+i}")
    FL = FS[31 % NS]; FA = FS[0]
    a(f"s_nop 1\n{smf(O1, FL+8, S1+8)}")
    stampc(a, 7)
    if not E("PST", 0): stamp(a, 8)
    a(f"""
s_lshl_b32 s64, s27, 11
s_xor_b32 s65, s64, 0x2000
v_add_u32 v14, s64, v3
v_add_u32 v15, s65, v3
s_lshr_b32 s64, s64, 2
s_lshr_b32 s65, s65, 2
v_lshlrev_b32 v{T+2}, 3, v2
v_add_u32 v{T+3}, s65, v{T+2}
v_add_u32 v{T+2}, s64, v{T+2}
v_add_u32 v14, {L_OX:#x}, v14
v_add_u32 v15, {L_OX:#x}, v15
v_add_u32 v{T+2}, {L_LS:#x}, v{T+2}
v_add_u32 v{T+3}, {L_LS:#x}, v{T+3}
v_mov_b32 v{O0+9}, v{M0}
v_mov_b32 v{O1+9}, v{M1}
s_cmp_eq_u32 s52, 0
s_cbranch_scc1 P2_X0
ds_write_b128 v14, {vr(O0,4)}
ds_write_b128 v14, {vr(O0+4,4)} offset:1024
ds_write_b64 v{T+2}, {vr(O0+8,2)}
""")
    for i in range(5): a(f"v_mov_b64 {vr(O0+2*i,2)}, {vr(O1+2*i,2)}")
    for i in range(2): a(f"v_mov_b64 {vr(Q0+2*i,2)}, {vr(Q1+2*i,2)}")
    a(f"""
s_branch P2_X1
P2_X0:
ds_write_b128 v14, {vr(O1,4)}
ds_write_b128 v14, {vr(O1+4,4)} offset:1024
ds_write_b64 v{T+2}, {vr(O1+8,2)}
P2_X1:
s_lshl_b32 s55, s48, 1
s_add_u32 s55, s55, s52
s_lshl_b32 s55, s55, 5
s_add_u32 s55, s55, s53
s_lshl_b32 s56, s55, 10
s_add_u32 s56, s56, {WS_OF:#x}
s_lshl_b32 s66, s48, {3+FSH}
s_add_u32 s66, s66, {WS_F2:#x}
s_lshl_b32 s55, s49, {FSH}
s_add_u32 s55, s55, s66
s_waitcnt lgkmcnt(0)
s_barrier
ds_read_b64 {vr(S0+8,2)}, v{T+3}
ds_read_b128 {vr(S0,4)}, v15
ds_read_b128 {vr(S0+4,4)}, v15 offset:1024
s_mov_b32 s68, 0
s_waitcnt lgkmcnt(2)
v_min_f32 v{T+4}, v{O0+9}, v{S0+9}
v_sub_f32 v{T+5}, v{T+4}, v{O0+9}
v_sub_f32 v{T+6}, v{T+4}, v{S0+9}
v_exp_f32 v{T+5}, v{T+5}
v_exp_f32 v{T+6}, v{T+6}
v_add_f32 v{T+7}, v{O0+8}, v{S0+8}
v_mul_f32 v{O0+8}, v{O0+8}, v{T+5}
v_cmp_ngt_f32 vcc, {f32bits(2.0**40):#x}, v{T+7}
v_fmac_f32 v{O0+8}, v{S0+8}, v{T+6}
v_rcp_f32 v{T+2}, v{O0+8}
s_mov_b64 s[64:65], vcc
v_mul_f32 v{T+5}, v{T+5}, v{T+2}
v_mul_f32 v{T+6}, v{T+6}, v{T+2}
s_waitcnt lgkmcnt(0)
""")
    for i in range(8): a(f"v_mul_f32 v{O0+i}, v{O0+i}, v{T+5}")
    for i in range(8): a(f"v_fmac_f32 v{O0+i}, v{S0+i}, v{T+6}")
    a(f"""
v_add_f32 v{T+3}, |v{O0}|, |v{O0+1}|
v_add_f32 v{T+4}, |v{O0+2}|, |v{O0+3}|
v_add_f32 v{T+5}, |v{O0+4}|, |v{O0+5}|
v_add_f32 v{T+6}, |v{O0+6}|, |v{O0+7}|
v_add_f32 v{T+3}, v{T+3}, v{T+4}
v_add_f32 v{T+5}, v{T+5}, v{T+6}
v_add_f32 v{T+3}, v{T+3}, v{T+5}
v_cmp_ngt_f32 vcc, 0x7f800000, v{T+3}
s_or_b64 vcc, vcc, s[64:65]
s_cbranch_vccnz P2_FALLBACK
P2_STORE:
""")
    for i in range(4): a(f"v_cvt_pk_bf16_f32 v{S0+i}, v{O0+2*i}, v{O0+2*i+1}")
    a(f"""
buffer_store_dwordx4 {vr(S0,4)}, v3, s[32:35], s56 offen sc1
v_mov_b32 v{T+2}, s26
v_mov_b32 v{T+3}, 0
s_add_u32 s69, s30, s31
s_and_b32 s69, s69, 3
s_cmp_lt_u32 s27, 4
s_cbranch_scc1 P3_COMPUTE
s_and_b32 s70, s51, 1
s_lshl_b32 s71, s48, 1
s_add_u32 s71, s71, s70
v_and_b32 v4, 7, v2
v_lshlrev_b32 v4, {FSH}, v4
s_mov_b32 s68, {POLL_MAX}
s_lshl_b32 s71, s71, 15
s_lshr_b32 s67, s51, 1
s_lshl_b32 s67, s67, 12
s_add_u32 s71, s71, s67
s_add_u32 s71, s71, {WS_OF:#x}
s_lshl_b32 s70, s70, 13
s_add_u32 s70, s70, s67
s_waitcnt vmcnt(0)
s_barrier
""")
    stamp(a, 9)
    a(f"""
P3_POLL:
s_sleep {SL2}
buffer_load_dword v5, v4, s[32:35], s66 offen sc1
s_sub_u32 s68, s68, 1
s_cbranch_scc1 P3_POLLED
s_waitcnt vmcnt(0)
v_cmp_ne_u32 vcc, s26, v5
s_cbranch_vccnz P3_POLL
P3_POLLED:
""")
    stamp(a, 10)
    for n in range(4):
        a(f"""s_add_u32 s64, s69, {n}
s_and_b32 s64, s64, 3
s_lshl_b32 s65, s64, 14
s_add_u32 s65, s65, s70
s_add_u32 m0, s65, {L_OF:#x}
s_lshl_b32 s64, s64, 13
s_add_u32 s64, s64, s71""")
        for i in range(4): a(f"buffer_load_dwordx4 v3, s[32:35], s64 offen offset:{i*1024} sc1 lds")
    for n in range(4): a(f"s_waitcnt vmcnt({12-4*n})\ns_barrier")
    endpgm(a)
    ACC3 = 64; X = 80; Y = 88; FR = 16; T3 = 104; B = 48
    a(f"""
P3_COMPUTE:
s_and_b32 s70, s27, 1
s_lshr_b32 s71, s27, 1
v_lshrrev_b32 v4, 5, v2
v_and_b32 v5, 31, v2
s_lshl_b32 s66, s48, 6
s_lshl_b32 s67, s70, 5
s_add_u32 s66, s66, s67
v_add_u32 v12, s66, v5
s_lshl_b32 s67, s49, 6
s_lshl_b32 s60, s71, 5
s_add_u32 s67, s67, s60
v_lshl_add_u32 v13, v4, 4, s67
v_lshlrev_b32 v14, 10, v12
v_lshl_add_u32 v14, v13, 1, v14
v_lshlrev_b32 v15, 3, v12
v_lshlrev_b32 v13, 2, v13
v_mov_b32 v6, {L_MISC:#x}
ds_read_b32 v{T3}, v6
""")
    srd(a, 40, 4, 0x200000)
    srd(a, 44, 22, 0x200000)
    a(f"""
s_mov_b32 s60, {WS_G:#x}
s_waitcnt vmcnt(0)
s_barrier
s_cmp_lg_u32 s27, 0
s_cbranch_scc1 P3_NOF2
s_mov_b64 exec, 1
buffer_store_dword v{T+2}, v{T+3}, s[32:35], s55 offen sc1
s_mov_b64 exec, -1
P3_NOF2:
""")
    stamp(a, 9)
    a(f"""
buffer_load_dwordx2 {vr(T3+6,2)}, v15, s[32:35], s60 offen sc1
buffer_load_dwordx4 {vr(X,4)}, v14, s[40:43], 0 offen
buffer_load_dwordx4 {vr(X+4,4)}, v14, s[40:43], 0 offen offset:16
s_lshl_b32 s66, s70, 13
s_add_u32 s66, s66, {L_OF:#x}
v_add_u32 v10, s66, v3
v_bfe_u32 v6, v2, 2, 2
v_lshl_add_u32 v7, v4, 2, v6
v_lshlrev_b32 v7, 7, v7
v_lshrrev_b32 v6, 1, v6
v_xor_b32 v6, s71, v6
v_lshl_add_u32 v7, v6, 6, v7
v_and_b32 v6, 1, v2
v_lshl_add_u32 v7, v6, 5, v7
v_bfe_u32 v6, v2, 4, 1
v_lshl_add_u32 v7, v6, 4, v7
v_bfe_u32 v6, v2, 1, 1
v_lshl_add_u32 v11, v6, 3, v7
""")
    for i in range(8): a(f"v_mov_b64 {vr(ACC3+2*i,2)}, 0")
    a(f"""
s_waitcnt lgkmcnt(0)
v_and_b32 v{T3+2}, 0x7ff, v{T3}
v_sub_u32 v{T3+2}, 0x7ff, v{T3+2}
v_cmp_eq_u32 s[76:77], v{T3+2}, v12
v_and_b32 v{T3}, 0xffff0000, v{T3}
v_ashrrev_i32 v{T3+3}, 31, v{T3}
v_not_b32 v{T3+3}, v{T3+3}
v_or_b32 v{T3+3}, 0x80000000, v{T3+3}
v_xor_b32 v{T3}, v{T3}, v{T3+3}
v_and_b32 v{T3}, 0xffff0000, v{T3}
v_mul_f32 v{T3}, {f32bits(-LOG2E):#x}, v{T3}
v_exp_f32 v{T3}, v{T3}
s_mov_b32 s68, {POLL_MAX}
P3_GW:
s_waitcnt vmcnt(0)
v_cmp_ne_u32 vcc, s26, v{T3+7}
s_cbranch_vccz P3_GOK
s_sub_u32 s68, s68, 1
s_cbranch_scc1 P3_GOK
buffer_load_dwordx2 {vr(T3+6,2)}, v15, s[32:35], s60 offen sc1
s_branch P3_GW
P3_GOK:
v_mov_b32 v{T3+1}, v{T3+6}
v_sub_f32 v{T3+4}, 1.0, v{T3+6}
v_add_f32 v{T3}, 1.0, v{T3}
v_rcp_f32 v{T3}, v{T3}
""")
    for i in range(8):
        a(f"v_lshlrev_b32 v{B+2*i}, 16, v{X+i}\nv_and_b32 v{B+2*i+1}, 0xffff0000, v{X+i}")
    a(f"""
s_cmp_eq_u64 s[76:77], 0
s_cbranch_scc1 P3_NOSEL
s_mov_b32 s60, {WS_F3:#x}
s_mov_b32 s68, {POLL_MAX}
v_mul_u32_u24 v6, 12, v2
P3_POLL3:
buffer_load_dwordx4 {vr(Y,4)}, v3, s[32:35], s60 offen sc1
buffer_load_dwordx3 {vr(Y+4,3)}, v6, s[32:35], s60 offen offset:1024 sc1
s_sub_u32 s68, s68, 1
s_cbranch_scc1 P3_POLLED3
s_waitcnt vmcnt(0)
v_cmp_ne_u32 vcc, s26, v{Y}
""")
    for i in range(1, 7): a(f"v_cmp_ne_u32 s[64:65], s26, v{Y+i}\ns_or_b64 vcc, vcc, s[64:65]")
    a(f"""
s_cbranch_vccnz P3_POLL3
P3_POLLED3:
s_mov_b32 s60, {WS_Y:#x}
v_lshl_add_u32 v6, v5, 11, v13
""")
    for i in range(4): a(f"buffer_load_dwordx4 {vr(Y+4*i,4)}, v6, s[32:35], s60 offen offset:{16*i} sc1")
    a("s_waitcnt vmcnt(0)")
    for pat in ("row_ror:8", "row_ror:4", "row_ror:2", "row_ror:1"):
        for i in range(16): a(f"v_add_f32_dpp v{Y+i}, v{Y+i}, v{Y+i} {pat} row_mask:0xf bank_mask:0xf")
    for i in range(16): a(f"v_mov_b32 v{FR+i}, v{Y+i}")
    for i in range(16): a(f"v_permlane16_swap_b32 v{FR+i}, v{Y+i}")
    for i in range(16): a(f"v_add_f32 v{Y+i}, v{Y+i}, v{FR+i}")
    a("s_mov_b64 exec, s[76:77]")
    for i in range(16): a(f"v_fmac_f32 v{B+i}, v{Y+i}, v{T3}")
    a("s_mov_b64 exec, -1\nP3_NOSEL:")
    for i in range(16): a(f"v_mul_f32 v{B+i}, v{B+i}, v{T3+4}")
    a(f"""
s_add_u32 s66, s69, 4
P3_LOOP:
s_and_b32 s60, s69, 3
s_lshl_b32 s60, s60, 14
v_add_u32 v8, s60, v10
v_add_u32 v9, s60, v11
s_add_u32 s69, s69, 1
s_barrier
""")
    def reads3(hh):
        b = FR + 8*(hh % 4)
        a(f"ds_read_b128 {vr(b,4)}, v8 offset:{hh*1024}")
        a(f"ds_read_b64_tr_b16 {vr(b+4,2)}, v9 offset:{hh*2048}")
        a(f"ds_read_b64_tr_b16 {vr(b+6,2)}, v9 offset:{hh*2048+1024}")
    for hh in range(4): reads3(hh)
    for hh in range(8):
        b = FR + 8*(hh % 4)
        a(f"s_waitcnt lgkmcnt({3*min(3, 7-hh)})")
        a(f"v_mfma_f32_32x32x16_bf16 {vr(ACC3,16)}, {vr(b+4,4)}, {vr(b,4)}, {vr(ACC3,16)}")
        if hh + 4 < 8: reads3(hh+4)
    a(f"""
s_cmp_lg_u32 s69, s66
s_cbranch_scc1 P3_LOOP
s_nop 10
""")
    stamp(a, 10)
    for i in range(16): a(f"v_fmac_f32 v{B+i}, v{ACC3+i}, v{T3+1}")
    for i in range(8): a(f"v_cvt_pk_bf16_f32 v{X+i}, v{B+2*i}, v{B+2*i+1}")
    a(f"""
buffer_store_dwordx4 {vr(X,4)}, v14, s[44:47], 0 offen
buffer_store_dwordx4 {vr(X+4,4)}, v14, s[44:47], 0 offen offset:16
s_or_b32 s64, s2, s27
s_cbranch_scc1 L_END
s_mov_b32 s64, {WS_E:#x}
s_mov_b64 exec, 1
buffer_store_dword v{T+2}, v{T+3}, s[32:35], s64 offen sc1
L_END:
""")
    endpgm(a)
    a("L_EXIT:\ns_endpgm")
    A = T+4; R = T+8; H = T+44
    assert T+76 <= FS[0]
    def flagstore(ret, addr_lines):
        a(f"{addr_lines}\nv_mov_b32 v{T+2}, s26\nv_mov_b32 v{T+3}, 0\ns_waitcnt vmcnt(12)\ns_mov_b64 exec, 1")
        a(f"buffer_store_dword v{T+2}, v{T+3}, s[32:35], s65 offen sc1\ns_mov_b64 exec, -1\ns_branch {ret}")
    def cntwait(lab):
        a(f"""v_mov_b32 v{A}, {L_MISC+4:#x}
s_mov_b32 s79, {POLL_MAX}
{lab}:
ds_read_b32 v{A+1}, v{A}
s_sub_u32 s79, s79, 1
s_cbranch_scc1 {lab}OK
s_waitcnt lgkmcnt(0)
v_cmp_ne_u32 vcc, 4, v{A+1}
s_cbranch_vccz {lab}OK
s_sleep 2
s_branch {lab}
{lab}OK:""")
    a(f"""
FW_LD:
s_mov_b32 s79, {POLL_MAX}
s_mov_b32 s65, {WS_KG:#x}
buffer_load_dwordx4 {vr(KG,4)}, v3, s[32:35], s65 offen sc1
buffer_load_dwordx4 {vr(KG+4,4)}, v3, s[32:35], s65 offen offset:1024 sc1
s_branch FW_LD_RET
FW_KEYRE:
s_mov_b32 s65, {WS_KG:#x}
buffer_load_dwordx4 {vr(KG,4)}, v3, s[32:35], s65 offen sc1
buffer_load_dwordx4 {vr(KG+4,4)}, v3, s[32:35], s65 offen offset:1024 sc1
s_waitcnt vmcnt(0)
FW_KEYS:
s_waitcnt vmcnt(12)
v_cmp_ne_u32 vcc, s26, v{KG+1}
v_cmp_ne_u32 s[66:67], s26, v{KG+3}
s_or_b64 vcc, vcc, s[66:67]
v_cmp_ne_u32 s[66:67], s26, v{KG+5}
s_or_b64 vcc, vcc, s[66:67]
v_cmp_ne_u32 s[66:67], s26, v{KG+7}
s_or_b64 vcc, vcc, s[66:67]
s_sub_u32 s79, s79, 1
s_cbranch_scc1 FW_KEYOK
s_cbranch_vccnz FW_KEYRE
FW_KEYOK:
v_max3_u32 v{KG}, v{KG}, v{KG+2}, v{KG+4}
v_max_u32 v{KG}, v{KG}, v{KG+6}
""")
    umax_reduce64(a, KG, KG+1)
    srd(a, XS_SRD, 4, 0x200000)
    XF = T+68
    a(f"""
v_readfirstlane_b32 s65, v{KG}
v_mov_b32 v{KG+1}, {L_MISC:#x}
ds_write_b32 v{KG+1}, v{KG}
v_lshrrev_b32 v{A}, 4, v2
v_lshlrev_b32 v{A}, 4, v{A}
s_and_b32 s65, s65, 0x7ff
s_sub_u32 s65, 0x7ff, s65
s_lshl_b32 s65, s65, 10
s_lshl_b32 s66, s28, 7
s_add_u32 s65, s65, s66
buffer_load_dwordx4 {vr(XF,4)}, v{A}, s[{XS_SRD}:{XS_SRD+3}], s65 offen
buffer_load_dwordx4 {vr(XF+4,4)}, v{A}, s[{XS_SRD}:{XS_SRD+3}], s65 offen offset:64
s_branch FW_KEYS_RET
FW_S1:
""")
    cntwait("FW_C1")
    a(f"""
v_lshrrev_b32 v{A}, 4, v2
v_bfe_u32 v{A+1}, v2, 2, 2
v_lshl_add_u32 v{A}, v{A}, 3, v{A+1}
v_lshlrev_b32 v{A}, 7, v{A}
v_and_b32 v{A+2}, 3, v2
v_lshl_add_u32 v{A}, v{A+2}, 3, v{A}
v_lshrrev_b32 v{A+1}, 1, v{A+1}
v_lshl_add_u32 v{A}, v{A+1}, 6, v{A}
v_add_u32 v{A}, {L_FG:#x}, v{A}
v_xor_b32 v{A+1}, 64, v{A}
s_waitcnt vmcnt(12)
""")
    AC = T+36
    for m in range(2):
        for ks in range(2):
            for q in range(4):
                ad = A + (q >> 1)
                for jj in range(2):
                    a(f"ds_read_b64_tr_b16 {vr(R+4*q+2*jj,2)}, v{ad} offset:{m*0x2000 + ks*4096 + jj*512 + (q&1)*32}")
            for q in range(4):
                acc = vr(AC + 4*(m*4+q), 4)
                a(f"s_waitcnt lgkmcnt({6-2*q})")
                a(f"v_mfma_f32_16x16x32_bf16 {acc}, {vr(XF+4*ks,4)}, {vr(R+4*q,4)}, {acc if ks else 0}")
    a(f"""
v_lshlrev_b32 v{A}, 7, v2
s_lshl_b32 s65, s29, 13
s_lshl_b32 s66, s28, 4
s_add_u32 s65, s65, s66
s_add_u32 s65, s65, {WS_PRE:#x}
s_nop 3
v_mov_b32 v{AC+1}, v{AC+16}
v_mov_b32 v{AC+2}, s26
""")
    for lo, hi, q in ((0xffff0000, 0, 1), (0, 0xffff, 2), (0, 0xffff0000, 3)):
        a(f"s_mov_b32 exec_lo, {lo:#x}\ns_mov_b32 exec_hi, {hi:#x}\nv_mov_b32 v{AC}, v{AC+4*q}\nv_mov_b32 v{AC+1}, v{AC+16+4*q}")
    G = T+40
    HT = L_XS
    a(f"""
s_mov_b64 exec, -1
buffer_store_dwordx4 {vr(AC,4)}, v{A}, s[32:35], s65 offen sc1
s_branch FW_S1_RET
FW_S2A:
s_mov_b32 s79, {POLL_MAX}
s_lshl_b32 s65, s60, 10
s_add_u32 s65, s65, {WS_PRE:#x}
buffer_load_dwordx4 {vr(G,4)}, v3, s[32:35], s65 offen sc1
s_lshl_b32 s66, s27, 8
s_add_u32 s66, s66, {HT - 6*256:#x}
v_lshl_add_u32 v{A}, v2, 2, s66
v_mov_b32 v{A+1}, 0
ds_write_b32 v{A}, v{A+1}
s_branch FW_S2A_RET
FW_S2RE:
s_sleep 8
s_lshl_b32 s65, s60, 10
s_add_u32 s65, s65, {WS_PRE:#x}
buffer_load_dwordx4 {vr(G,4)}, v3, s[32:35], s65 offen sc1
s_waitcnt vmcnt(0)
FW_S2:
s_waitcnt vmcnt(12)
v_cmp_ne_u32 vcc, s26, v{G+2}
s_sub_u32 s79, s79, 1
s_cbranch_scc1 FW_S2OK
s_cbranch_vccnz FW_S2RE
FW_S2OK:
v_bfe_u32 v{A+2}, v2, 2, 3
v_lshlrev_b32 v{A+2}, 9, v{A+2}
v_and_b32 v{A+3}, 3, v2
v_lshl_add_u32 v{A+2}, v{A+3}, 3, v{A+2}
v_add_u32 v{A+2}, s68, v{A+2}
""")
    WF = R; YA = T+56
    pats = ("quad_perm:[1,0,3,2]", "quad_perm:[2,3,0,1]", "row_half_mirror")
    for k, pat in enumerate(pats):
        for i in range(2): a(f"v_add_f32_dpp v{G+i}, v{G+i}, v{G+i} {pat} row_mask:0xf bank_mask:0xf")
        for q in range(4*k, 4*k+4): a(f"ds_read_b64_tr_b16 {vr(WF+2*q,2)}, v{A+2} offset:{q*32}")
    a(f"""
v_mul_f32 v{G+2}, {f32bits(-LOG2E):#x}, v{G}
v_exp_f32 v{G+2}, v{G+2}
v_mul_f32 v{G}, v{G}, v{G+1}
s_lshl_b32 s66, s27, 8
s_add_u32 s66, s66, {HT - 6*256 + 96:#x}
v_add_f32 v{G+2}, 1.0, v{G+2}
v_rcp_f32 v{G+2}, v{G+2}
v_lshrrev_b32 v{A}, 3, v2
v_lshl_add_u32 v{A}, v{A}, 1, s66
v_mul_f32 v{G}, v{G}, v{G+2}
v_cvt_pk_bf16_f32 v{G}, v{G}, v{G}
ds_write_b16 v{A}, v{G}
v_lshrrev_b32 v{A}, 4, v2
v_lshl_add_u32 v{A}, v{A}, 3, s66
v_bfe_u32 v{A+1}, v2, 2, 2
v_lshlrev_b32 v{A+1}, 5, v{A+1}
v_sub_u32 v{A}, v{A}, v{A+1}
s_waitcnt lgkmcnt(4)
""")
    for q in range(12, 16): a(f"ds_read_b64_tr_b16 {vr(WF+2*q,2)}, v{A+2} offset:{q*32}")
    for j in range(4): a(f"ds_read_b64 {vr(H+2*j,2)}, v{A} offset:{j*32}")
    a(f"""
v_lshlrev_b32 v{A+1}, 2, v2
s_and_b32 s65, s60, 31
s_lshl_b32 s65, s65, 11
s_and_b32 s66, s27, 1
s_lshl_b32 s66, s66, 10
s_add_u32 s65, s65, s66
s_add_u32 s65, s65, {WS_Y:#x}
s_waitcnt lgkmcnt(0)""")
    for j in range(4):
        for Qn in range(4):
            acc = vr(YA + 4*Qn, 4)
            a(f"v_mfma_f32_16x16x16_bf16 {acc}, {vr(H+2*j,2)}, {vr(WF+2*(Qn*4+j),2)}, {acc if j else 0}")
    a("s_nop 7")
    for Qn in range(4):
        a(f"buffer_atomic_add_f32 v{YA+4*Qn}, v{A+1}, s[32:35], s65 offen offset:{Qn*256}")
    a("s_branch FW_S2_RET\nFW_F3:")
    flagstore("FW_F3_RET", f"s_lshl_b32 s65, s60, 1\ns_and_b32 s66, s27, 1\ns_add_u32 s65, s65, s66\ns_lshl_b32 s65, s65, 2\ns_add_u32 s65, s65, {WS_F3:#x}")
    a(f"""
P2_FALLBACK:
s_mov_b32 s64, s54
s_add_u32 s65, s54, 0x20000
v_mov_b32 v{T+2}, 0xff800000
FB_MAX:
buffer_load_dwordx4 {vr(FA,4)}, v3, s[32:35], s64 offen sc1
s_add_u32 s64, s64, 2048
s_waitcnt vmcnt(0)
v_mfma_f32_32x32x16_bf16 {vr(S0,16)}, {vr(FA,4)}, {vr(Q0,4)}, 0
s_nop 15
""")
    for i in range(8): a(f"v_max3_f32 v{T+2}, v{T+2}, v{S0+2*i}, v{S0+2*i+1}")
    a(f"""
s_cmp_lt_u32 s64, s65
s_cbranch_scc1 FB_MAX
v_mov_b32 v{T+3}, v{T+2}
s_nop 1
v_permlane32_swap_b32 v{T+3}, v{T+2}
s_nop 1
v_max_f32 v{T+2}, v{T+2}, v{T+3}
""")
    for i in range(16): a(f"v_mul_f32 v{M0+i}, -1.0, v{T+2}")
    for i in range(8): a(f"v_mov_b64 {vr(O0+2*i,2)}, 0")
    a(f"""
s_mov_b32 s64, s54
FB_ACC:
buffer_load_dwordx4 {vr(FA,4)}, v3, s[32:35], s64 offen sc1
s_mov_b64 exec, s[58:59]
buffer_load_dwordx4 {vr(FA+4,4)}, v3, s[32:35], s64 offen offset:1024 sc1
buffer_load_dwordx4 {vr(FA+8,4)}, v3, s[32:35], s64 offen offset:1280 sc1
s_mov_b64 exec, -1
s_add_u32 s64, s64, 2048
s_waitcnt vmcnt(0)
{qk(S0, FA, Q0, M0)}
s_nop 15
""")
    for i in range(16): a(f"v_exp_f32 v{S0+i}, v{S0+i}")
    a(f"""
s_nop 1
{smf(O0, FA+4, S0)}
{smf(O0, FA+8, S0+8)}
s_cmp_lt_u32 s64, s65
s_cbranch_scc1 FB_ACC
s_nop 15
v_rcp_f32 v{T+2}, v{O0+8}
s_nop 0
""")
    for i in range(8): a(f"v_mul_f32 v{O0+i}, v{O0+i}, v{T+2}")
    a("s_branch P2_STORE\nL_CODE_END:")
    return name

def main():
    body = Asm()
    name = gen(body)
    vg, sg = (256, 100)
    txt = body.text()
    txt = txt.replace("    s_mov_b32 s54, 1\n    s_waitcnt lgkmcnt(0)\n    s_cselect_b32 s36", "    s_mov_b32 s54, 1\n    s_cmp_lt_u32 s51, 2\n    s_waitcnt lgkmcnt(0)\n    s_cselect_b32 s36")
    out = f"""; generated by gen/gen6.py (own generator script)
; @launch grid=(256,1,1) block=(512,1,1) lds={LDS_BYTES}
.amdgcn_target "amdgcn-amd-amdhsa--gfx950"
.text
""" + txt + f""".section .rodata,"a"
.p2align 6
.amdhsa_kernel {name}
  .amdhsa_next_free_vgpr {vg}
  .amdhsa_next_free_sgpr {sg}
  .amdhsa_accum_offset {vg}
  .amdhsa_group_segment_fixed_size 0
  .amdhsa_kernarg_size 96
  .amdhsa_user_sgpr_count 2
  .amdhsa_user_sgpr_kernarg_segment_ptr 1
  .amdhsa_system_sgpr_workgroup_id_x 1
.end_amdhsa_kernel
"""
    if EXP & 1:
        i0 = out.index("P2_PRE:"); i1 = out.index("P2_X0:")
        out = out[:i0] + out[i0:i1].replace(" sc1", "") + out[i1:]
    if EXP & 2:
        out = "\n".join(("    buffer_load_dwordx4 v3, s[44:47], s62 offen lds" if ("s[36:39], s61 offen lds" in l or "s[40:43], s61 offen lds" in l) else l) for l in out.split("\n"))
    if EXP & 4:
        i0 = out.index("P2_BQ:"); i1 = out.index("P2_X0:")
        out = out[:i0] + "\n".join(l for l in out[i0:i1].split("\n") if "s_cbranch_scc1 FW_" not in l) + "\n" + out[i1:]
        out = out.replace("    s_cmp_eq_u64 s[76:77], 0\n    s_cbranch_scc1 P3_NOSEL", "    s_branch P3_NOSEL")
    path = sys.argv[1] if len(sys.argv) > 1 else f"cdna_kernels/{NAME}.s"
    open(path, "w").write(out)
main()
```
